```python
import torch

def _softmax(x, axis=-1):
    return torch.softmax(x, dim=axis)
def _gelu(x):
    return torch.nn.functional.gelu(x, approximate="tanh")
def _silu(x):
    return torch.nn.functional.silu(x)
def _sigmoid(x):
    return torch.sigmoid(x)
def _layernorm(x, axis=-1, eps=1e-5):
    m = x.mean(dim=axis, keepdim=True)
    v = x.var(dim=axis, keepdim=True, unbiased=False)
    return (x - m) / torch.sqrt(v + eps)
def _scatter_add(tgt, idx, src, axis=0):
    return tgt.clone().index_add_(axis, idx, src)
def _segment_sum(src, seg, n):
    out = torch.zeros((n,) + src.shape[1:], dtype=src.dtype)
    return out.index_add_(0, seg, src)
def _pad(x, pw):
    flat = tuple(v for pair in reversed(pw) for v in pair)
    return torch.nn.functional.pad(x, flat)

kernel_name = 'sequential_preLN__mha_block__glu_gated_reglu__prompt'

def setup_inputs():

    _w = (lambda a: (lambda t: t.to(torch.bfloat16) if t.is_floating_point() else t)(torch.as_tensor(a)))
    def _A_setup():
        B, S, D, H = 1, 2048, 448, 16
        return {
            "x": _w((lambda *s: torch.randn(*s, dtype=torch.bfloat16) * 0.05)(B, S, D)),
            "wqkv": _w((lambda *s: torch.randn(*s, dtype=torch.bfloat16) * 0.05)(D, 3 * D)),
            "wo": _w((lambda *s: torch.randn(*s, dtype=torch.bfloat16) * 0.05)(D, D)),
        }
    _A_in = _A_setup()

    def _B_setup():
        B, S, D, F = 1, 2048, 448, 1792
        return {
            "x": _w((lambda *s: torch.randn(*s, dtype=torch.bfloat16) * 0.05)(B, S, D)),
            "W_gate": _w((lambda *s: torch.randn(*s, dtype=torch.bfloat16) * 0.4)(D, F) * (2.0 / D) ** 0.5),
            "W_up": _w((lambda *s: torch.randn(*s, dtype=torch.bfloat16) * 0.4)(D, F) * (2.0 / D) ** 0.5),
            "W_down": _w((lambda *s: torch.randn(*s, dtype=torch.bfloat16) * 0.4)(F, D) * (1.0 / F) ** 0.5),
        }
    _B_in = _B_setup()

    return {
        "A_x": _A_in["x"],
        "A_wqkv": _A_in["wqkv"],
        "A_wo": _A_in["wo"],
        "B_x": _B_in["x"],
        "B_W_gate": _B_in["W_gate"],
        "B_W_up": _B_in["W_up"],
        "B_W_down": _B_in["W_down"],
    }

def reference(A_x, A_wqkv, A_wo, B_x, B_W_gate, B_W_up, B_W_down):
    def _A_ref(x, wqkv, wo):
        B, S, D = x.shape
        H = 16
        Dh = D // H
        qkv = (lambda x, *d: x.permute(*d))((x @ wqkv).reshape(B, S, 3, H, Dh), 2, 0, 3, 1, 4)
        q, k, v = qkv[0], qkv[1], qkv[2]
        scores = torch.einsum("bhqd,bhkd->bhqk", q, k) * (Dh ** -0.5)
        p = _softmax(scores, axis=-1)
        o = torch.einsum("bhqk,bhkd->bhqd", p, v)
        return (lambda x, *d: x.permute(*d))(o, 0, 2, 1, 3).reshape(B, S, D) @ wo

    def _B_ref(x, W_gate, W_up, W_down):
        gate = torch.einsum("bsd,df->bsf", x, W_gate)
        up = torch.einsum("bsd,df->bsf", x, W_up)
        gate = gate * (lambda x, dt: x.to(dt))(gate > 0, gate.dtype)
        h = gate * up
        return torch.einsum("bsf,fd->bsd", h, W_down)

    x = A_x
    h = x + _A_ref(_layernorm(x, axis=-1), A_wqkv, A_wo)
    h2 = h + _B_ref(_layernorm(h, axis=-1), B_W_gate, B_W_up, B_W_down)
    return h2
```

```python
class K:
    def __init__(self, name):
        self.name = name
        self.lines = []
        self.nv = 0
        self.na = 0
        self.uid = 0
    def e(self, s=""):
        for ln in s.split("\n"):
            self.lines.append("    " + ln.strip() if ln.strip() and not ln.strip().endswith(":") else ln.strip())
    def label(self, base):
        self.uid += 1
        return f"L_{self.name}_{base}_{self.uid}"
    def text(self, vgpr, agpr=0, sgpr=102, wgid_y=False):
        acc = (vgpr + 3) // 4 * 4
        nfv = acc + agpr if agpr else vgpr
        hdr = f""".text
.globl {self.name}
.p2align 8
.type {self.name},@function
{self.name}:
"""
        body = "\n".join(self.lines)
        kd = f"""
.section .rodata,"a"
.p2align 6
.amdhsa_kernel {self.name}
  .amdhsa_next_free_vgpr {nfv}
  .amdhsa_next_free_sgpr {sgpr}
  .amdhsa_accum_offset {acc}
  .amdhsa_group_segment_fixed_size 0
  .amdhsa_kernarg_size 80
  .amdhsa_user_sgpr_count 2
  .amdhsa_user_sgpr_kernarg_segment_ptr 1
  .amdhsa_system_sgpr_workgroup_id_x 1
  .amdhsa_float_denorm_mode_32 3
.end_amdhsa_kernel
"""
        return hdr + body + kd

def v(i, n=1):
    return f"v{i}" if n == 1 else f"v[{i}:{i+n-1}]"
def a(i, n=1):
    return f"a{i}" if n == 1 else f"a[{i}:{i+n-1}]"
def s(i, n=1):
    return f"s{i}" if n == 1 else f"s[{i}:{i+n-1}]"

HEADER = open('sequential_preLN__mha_block__glu_gated_reglu__prompt.s.ref').read().split("; Override launch")[0] if __name__ != "x" else ""

def build_file(launches, kernel_texts):
    out = HEADER
    for (name, grid, block, lds) in launches:
        out += f"; @launch kernel={name} grid=({grid},1,1) block=({block},1,1) lds={lds}\n"
    out += '.amdgcn_target "amdgcn-amd-amdhsa--gfx950"\n'
    out += "\n".join(kernel_texts)
    return out
```

```python
from asmlib import *
import math, struct
def f2u(x): return struct.unpack("<I", struct.pack("<f", x))[0]
QF, KVF, OF, HF, MF, FLG = 0x0, 0x200000, 0x600000, 0x800000, 0xA00000, 0x1200000
WSREC = 0x1400000
sX, sW, sW2, sWS, sOUT = 8, 12, 16, 20, 24
sWAVE, sG, sJ, sT0, sT1, sT2, sT3, sM = 28, 29, 30, 31, 32, 33, 34, 35
PTR = 40
vL = 1
MF32 = "v_mfma_f32_32x32x16_bf16"
ST = "sc1"

def srd(k, d, slot, nbytes):
    k.e(f"s_mov_b32 s{d}, s{PTR+2*slot}\ns_mov_b32 s{d+1}, s{PTR+2*slot+1}\ns_mov_b32 s{d+2}, {nbytes}\ns_mov_b32 s{d+3}, 0x20000")

def prolog(k, nwg=256):
    Lok = k.label("go")
    k.e(f"""s_cmp_lt_u32 s2, {nwg}
    s_cbranch_scc1 {Lok}
    s_endpgm
    {Lok}:
    s_load_dwordx16 s[{PTR}:{PTR+15}], s[0:1], 0
    s_load_dwordx4 s[{PTR+16}:{PTR+19}], s[0:1], 64
    v_and_b32 v{vL}, 63, v0
    v_lshrrev_b32 v2, 6, v0
    s_and_b32 s{sG}, s2, 7
    v_readfirstlane_b32 s{sWAVE}, v2
    s_lshr_b32 s{sJ}, s2, 3
    s_lshr_b32 s{sT0}, s{sJ}, 4
    s_lshl_b32 s{sG}, s{sG}, 1
    s_add_u32 s{sG}, s{sG}, s{sT0}
    s_and_b32 s{sJ}, s{sJ}, 15
    s_waitcnt lgkmcnt(0)""")
    srd(k, sWS, 9, WSREC)

def dma(k, vaddr, srdreg, soff, m0expr=None):
    if m0expr is not None: k.e(f"s_mov_b32 m0, {m0expr}\ns_nop 0")
    k.e(f"buffer_load_dwordx4 v{vaddr}, s[{srdreg}:{srdreg+3}], {soff} offen lds")

def halfsum(k, r, t):
    k.e(f"v_mov_b32 v{t}, v{r}\ns_nop 1\nv_permlane32_swap_b32 v{r}, v{t}\ns_nop 1\nv_add_f32 v{r}, v{r}, v{t}")

def ln_stats(k, vS, vSS, t):
    halfsum(k, vS, t); halfsum(k, vSS, t)
    k.e(f"""v_mul_f32 v{vS}, {hex(f2u(-1.0/448))}, v{vS}
    v_mul_f32 v{vSS}, {hex(f2u(1.0/448))}, v{vSS}
    v_fma_f32 v{vSS}, -v{vS}, v{vS}, v{vSS}
    v_max_f32 v{vSS}, 0, v{vSS}
    v_add_f32 v{vSS}, {hex(f2u(1e-5))}, v{vSS}
    v_rsq_f32 v{vSS}, v{vSS}
    s_nop 0""")

def phaseA(k):
    SLOT, XB, NS = 28672, 16384, 5
    EX = SLOT*NS
    vXa, vWa, vXr, vWr = 2, 4, 5, 9
    vONE, vS, vSS, vC0, vC1, vT = 10, 11, 12, 13, 14, 15
    XF, WF, ACC = 16, 32, 64
    srd(k, sX, 0, 2048*896); srd(k, sW, 1, 448*2688)
    k.e(f"""v_lshrrev_b32 v{vT}, 3, v{vL}
    s_lshl_b32 s{sT0}, s{sWAVE}, 4
    v_add_u32 v{vT}, s{sT0}, v{vT}
    v_mul_u32_u24 v{vXa}, 896, v{vT}
    v_lshrrev_b32 v{vT}, 4, v{vL}
    v_and_b32 v{vC0}, 7, v{vL}
    v_xor_b32 v{vT}, v{vT}, v{vC0}
    v_xor_b32 v{vC0}, 4, v{vT}
    v_lshl_add_u32 v{vXa+1}, v{vC0}, 4, v{vXa}
    v_add_u32 v{vXa+1}, {8*896}, v{vXa+1}
    v_lshl_add_u32 v{vXa}, v{vT}, 4, v{vXa}
    s_and_b32 s{sT1}, s{sWAVE}, 3
    s_lshl_b32 s{sT0}, s{sT1}, 4
    v_lshrrev_b32 v{vT}, 2, v{vL}
    v_add_u32 v{vT}, s{sT0}, v{vT}
    v_mul_u32_u24 v{vWa}, 2688, v{vT}
    v_and_b32 v{vT}, 3, v{vL}
    v_lshl_add_u32 v{vWa}, v{vT}, 4, v{vWa}
    s_mul_i32 s36, s{sJ}, {128*896}
    s_mul_i32 s37, s{sG}, 56
    s_lshl_b32 s38, s{sWAVE}, 11
    s_lshl_b32 s39, s{sT1}, 10
    s_add_u32 s39, s39, {XB}""")
    def issue(c, tiles):
        sl = (c % NS) * SLOT
        k.e(f"s_add_u32 m0, s38, {sl}\ns_add_u32 s{sT0}, s36, {c*128}")
        dma(k, vXa, sX, f"s{sT0}")
        k.e(f"s_add_u32 m0, s38, {sl+1024}\ns_nop 0")
        dma(k, vXa+1, sX, f"s{sT0}")
        for t in tiles:
            k.e(f"s_add_u32 m0, s39, {sl + t*4096}\ns_add_u32 s{sT0}, s37, {c*64*2688 + t*896}")
            dma(k, vWa, sW, f"s{sT0}")
    def addrs():
        k.e(f"""v_and_b32 v{vT}, 31, v{vL}
        s_lshl_b32 s{sT0}, s{sT1}, 5
        v_add_u32 v{vC0}, s{sT0}, v{vT}
        v_lshlrev_b32 v{vC0}, 7, v{vC0}
        v_bfe_u32 v{vT}, v{vL}, 1, 3
        v_lshrrev_b32 v{vC1}, 5, v{vL}
        v_xor_b32 v{vT}, v{vT}, v{vC1}""")
        for s_ in range(4):
            k.e(f"v_xor_b32 v{vXr+s_}, {2*s_}, v{vT}\nv_lshl_add_u32 v{vXr+s_}, v{vXr+s_}, 4, v{vC0}")
        k.e(f"""v_bfe_u32 v{vT}, v{vL}, 2, 2
        v_lshl_add_u32 v{vT}, v{vC1}, 3, v{vT}
        v_lshlrev_b32 v{vWr}, 6, v{vT}
        v_bfe_u32 v{vT}, v{vL}, 4, 1
        v_lshl_add_u32 v{vWr}, v{vT}, 5, v{vWr}
        v_and_b32 v{vT}, 3, v{vL}
        v_lshl_add_u32 v{vWr}, v{vT}, 3, v{vWr}
        v_mov_b32 v{vONE}, 0x3f803f80
        v_mov_b32 v{vS}, 0
        v_mov_b32 v{vSS}, 0
        v_mov_b32 v{vC0}, 0
        v_mov_b32 v{vC1}, 0""")
    def body(tiles, isq):
        per = 2 + len(tiles); nr = 1 + 2*len(tiles)
        for c in range(NS): issue(c, tiles)
        addrs()
        def reads(s_):
            k.e(f"ds_read_b128 {v(XF+4*s_,4)}, v{vXr+s_}")
            for i, t in enumerate(tiles):
                for j in range(2):
                    k.e(f"ds_read_b64_tr_b16 {v(WF+8*s_+4*i+2*j,2)}, v{vWr} offset:{XB + t*4096 + s_*1024 + j*256}")
        for c in range(7):
            n = [4,3,3,3,2,1,0][c]
            k.e(f"s_waitcnt vmcnt({n*per})\ns_barrier")
            for s_ in range(3): reads(s_)
            if 1 <= c <= 2: issue(c+4, tiles)
            for s_ in range(4):
                k.e(f"s_waitcnt lgkmcnt({[2*nr,2*nr,nr,0][s_]})")
                for i, t in enumerate(tiles):
                    acc = v(ACC+16*i,16); cin = "0" if (c == 0 and s_ == 0) else acc
                    wf, xf = v(WF+8*s_+4*i,4), v(XF+4*s_,4)
                    k.e(f"{MF32} {acc}, {xf}, {wf}, {cin}" if t == 2 else f"{MF32} {acc}, {wf}, {xf}, {cin}")
                if s_ == 0: reads(3)
                if isq:
                    for r in range(4):
                        k.e(f"v_dot2_f32_bf16 v{vS}, v{XF+4*s_+r}, v{vONE}, v{vS}\nv_dot2_f32_bf16 v{vSS}, v{XF+4*s_+r}, v{XF+4*s_+r}, v{vSS}")
                Ls = k.label("cs")
                k.e(f"s_cmp_lg_u32 s{sT1}, {s_}\ns_cbranch_scc1 {Ls}")
                for r in range(4):
                    for i in range(len(tiles)):
                        k.e(f"v_dot2_f32_bf16 v{vC0+i}, v{WF+8*s_+4*i+r}, v{vONE}, v{vC0+i}")
                k.e(Ls + ":")
            if c < 6:
                d = ((c+1) % NS - c % NS) * SLOT
                for r in range(5): k.e(f"v_add_u32 v{vXr+r}, {d & 0xffffffff}, v{vXr+r}")
        k.e(f"s_lshl_b32 s{sT0}, s{sT1}, 2\nv_lshl_add_u32 v{vXa}, v{vL}, 4, s{sT0}\nv_add_u32 v{vXa}, {EX+1024}, v{vXa}\ns_nop 0")
        for i, t in enumerate(tiles): k.e(f"ds_write_b32 v{vXa}, v{vC0+i} offset:{t*1024}")
        k.e(f"""v_and_b32 v{vXa+1}, 31, v{vL}
        s_lshl_b32 s{sT0}, s{sT1}, 7
        s_add_u32 s{sT0}, s{sT0}, {EX}
        v_lshl_add_u32 v{vXa+1}, v{vXa+1}, 2, s{sT0}""")
        if isq:
            ln_stats(k, vS, vSS, vT)
            k.e(f"ds_write_b32 v{vXa+1}, v{vS}\nds_write_b32 v{vXa+1}, v{vSS} offset:512")
        k.e(f"""v_lshlrev_b32 v{vWa}, 4, v{vL}
        v_add_u32 v{vXa}, {EX+1024}, v{vWa}
        v_lshrrev_b32 v{vT}, 5, v{vL}
        v_lshl_add_u32 v{vWr}, v{vT}, 4, s{sT0}
        s_waitcnt lgkmcnt(0)
        s_barrier""")
        for i, t in enumerate(tiles): k.e(f"ds_read_b128 {v(XF+4*i,4)}, v{vXa} offset:{t*1024}")
        if not isq:
            k.e(f"ds_read_b32 v{vS}, v{vXa+1}\nds_read_b32 v{vSS}, v{vXa+1} offset:512")
            for g_ in range(4): k.e(f"ds_read_b128 {v(WF+4*g_,4)}, v{vWr} offset:{512+32*g_}")
        k.e(f"s_lshl_b32 s{sT0}, s{sG}, 4\ns_add_u32 s{sT0}, s{sT0}, s{sJ}\ns_lshl_b32 s{sT0}, s{sT0}, 2\ns_add_u32 s{sT0}, s{sT0}, s{sT1}")
        k.e(f"s_lshl_b32 s{sT0}, s{sT0}, {11 if isq else 12}\ns_add_u32 s{sT0}, s{sT0}, {QF if isq else KVF}")
        k.e("s_waitcnt lgkmcnt(0)")
        for i in range(len(tiles)):
            b = XF+4*i
            k.e(f"v_add_f32 v{b}, v{b}, v{b+1}\nv_add_f32 v{b+2}, v{b+2}, v{b+3}\nv_add_f32 v{b}, v{b}, v{b+2}")
        k.e("s_nop 1")
        for i, t in enumerate(tiles):
            acc = v(ACC+16*i,16)
            k.e(f"v_mfma_f32_32x32x2_f32 {acc}, v{vS}, v{XF+4*i}, {acc}" if t == 2 else f"v_mfma_f32_32x32x2_f32 {acc}, v{XF+4*i}, v{vS}, {acc}")
        if isq: k.e(f"v_mul_f32 v{vSS}, {hex(f2u(28**-0.5*math.log2(math.e)))}, v{vSS}")
        k.e(f"v_cmp_lt_u32 vcc, 31, v{vL}\nv_mov_b32 v{vT}, 0x3f80\ns_nop 7\ns_nop 7")
        P = 96
        for r in range(16): k.e(f"v_mul_f32 v{ACC+r}, v{ACC+r}, v{vSS}")
        for r in range(8): k.e(f"v_cvt_pk_bf16_f32 v{P+r}, v{ACC+2*r}, v{ACC+2*r+1}")
        if isq:
            k.e(f"v_cndmask_b32 v{P+6}, v{P+6}, 0, vcc\nv_cndmask_b32 v{P+7}, v{P+7}, 0, vcc")
        else:
            k.e(f"v_cndmask_b32 v{P+6}, v{P+6}, v{vONE}, vcc\nv_cndmask_b32 v{P+7}, v{P+7}, v{vT}, vcc")
        k.e(f"buffer_store_dwordx4 {v(P,4)}, v{vWa}, s[{sWS}:{sWS+3}], s{sT0} offen {ST}\nbuffer_store_dwordx4 {v(P+4,4)}, v{vWa}, s[{sWS}:{sWS+3}], s{sT0} offen offset:1024 {ST}")
        if not isq:
            k.e(f"v_and_b32 v{vT}, 31, v{vL}\nv_cmp_eq_u32 vcc, 28, v{vT}\ns_nop 1\nv_cndmask_b32 v{vC0}, 0, v{vONE}, vcc\nv_cmp_lt_u32 vcc, 27, v{vT}")
            for r in range(16): k.e(f"v_mul_f32 v{ACC+16+r}, v{ACC+16+r}, v{WF+r}")
            for r in range(8): k.e(f"v_cvt_pk_bf16_f32 v{P+8+r}, v{ACC+16+2*r}, v{ACC+16+2*r+1}")
            for r in range(8): k.e(f"v_cndmask_b32 v{P+8+r}, v{P+8+r}, v{vC0}, vcc")
            k.e(f"buffer_store_dwordx4 {v(P+8,4)}, v{vWa}, s[{sWS}:{sWS+3}], s{sT0} offen offset:2048 {ST}\nbuffer_store_dwordx4 {v(P+12,4)}, v{vWa}, s[{sWS}:{sWS+3}], s{sT0} offen offset:3072 {ST}")
    Lq, Le = k.label("Aq"), k.label("Aend")
    k.e(f"s_cmp_ge_u32 s{sWAVE}, 4\ns_cbranch_scc1 {Lq}")
    body([1,2], False)
    k.e(f"s_branch {Le}\n{Lq}:")
    body([0], True)
    k.e(Le + ":")
    return EX + 1024 + 3072

def phaseB(k):
    vA, vT, vT2, vLA = 2, 3, 4, 5
    Q, O, S, P, KV = 8, 24, 56, 88, 104
    LA = 0
    RD = 2048
    sKV, sIT, sPASS, sQH, sKQ = 36, 37, 38, 39, 60
    k.e(f"""v_lshlrev_b32 v{vA}, 4, v{vL}
    s_lshr_b32 s{sQH}, s{sWAVE}, 2
    s_and_b32 s{sKQ}, s{sWAVE}, 3
    s_lshl_b32 s{sT0}, s{sG}, 4
    s_add_u32 s{sT0}, s{sT0}, s{sJ}
    s_lshl_b32 s{sT0}, s{sT0}, 1
    s_add_u32 s{sT0}, s{sT0}, s{sQH}
    s_lshl_b32 s{sT0}, s{sT0}, 12
    s_add_u32 s{sT0}, s{sT0}, {QF}
    s_mov_b32 s{sPASS}, 0""")
    for i in range(4): k.e(f"buffer_load_dwordx4 {v(Q+4*i,4)}, v{vA}, s[{sWS}:{sWS+3}], s{sT0} offen offset:{1024*i}")
    def kvbase():
        k.e(f"s_lshl_b32 s{sKV}, s{sG}, 2\ns_add_u32 s{sKV}, s{sKV}, s{sKQ}\ns_lshl_b32 s{sKV}, s{sKV}, 16\ns_add_u32 s{sKV}, s{sKV}, {KVF}")
    def ld(slot):
        o = [f"buffer_load_dwordx4 {v(KV+16*slot+4*i,4)}, v{vA}, s[{sWS}:{sWS+3}], s{sKV} offen offset:{1024*i}" for i in range(4)]
        return o + [f"s_add_u32 s{sKV}, s{sKV}, 4096"]
    Lmain = k.label("Bmain"); k.e(Lmain + ":")
    kvbase()
    for sl in range(3):
        for o in ld(sl): k.e(o)
    for r in range(32): k.e(f"v_mov_b32 v{O+r}, 0")
    for r in range(8): k.e(f"v_mov_b32 v{P+8+r}, 0")
    for r in range(8): k.e(f"v_mov_b32 v{KV+48+8+r}, 0")
    def qk(n):
        kf = KV + 16*((n>>1) & 3); sb = S + 16*(n & 1); q = Q + 8*(n & 1)
        return [f"{MF32} {v(sb,16)}, {v(kf,4)}, {v(q,4)}, 0", f"{MF32} {v(sb,16)}, {v(kf+4,4)}, {v(q+4,4)}, {v(sb,16)}"]
    def pv(n):
        vf = KV + 16*((n>>1) & 3) + 8; p = P + 8*(n & 1); o = O + 16*(n & 1)
        return [f"{MF32} {v(o,16)}, {v(vf,4)}, {v(p,4)}, {v(o,16)}", f"{MF32} {v(o,16)}, {v(vf+4,4)}, {v(p+4,4)}, {v(o,16)}"]
    def sm(n):
        sb = S + 16*(n & 1); p = P + 8*(n & 1); o = []
        for i in range(16):
            o.append(f"v_exp_f32 v{sb+i}, v{sb+i}")
            if i >= 2 and i % 2 == 0: o.append(f"v_cvt_pk_bf16_f32 v{p+i//2-1}, v{sb+i-2}, v{sb+i-1}")
        return o, f"v_cvt_pk_bf16_f32 v{p+7}, v{sb+14}, v{sb+15}"
    k.e(f"s_waitcnt vmcnt(10)")
    for o in qk(0): k.e(o)
    k.e(f"s_mov_b32 s{sIT}, 4\ns_nop 7\ns_nop 1")
    Ll = k.label("Bloop"); k.e(".p2align 6\n" + Ll + ":")
    for n in range(8):
        ops, last = sm(n)
        a_, b_ = qk(n+1), pv(n-1)
        extra = []
        if n & 1:
            k.e("s_waitcnt vmcnt(6)")
            extra = ld(((n>>1) - 1) & 3)
        k.e(a_[0])
        for o in ops[0:5]: k.e(o)
        k.e(a_[1])
        for o in ops[5:11]: k.e(o)
        k.e(b_[0])
        for i, o in enumerate(ops[11:17]):
            k.e(o)
            if i < len(extra) and i < 2: k.e(extra[i])
        k.e(b_[1])
        for i, o in enumerate(ops[17:23]):
            k.e(o)
            if 2+i < len(extra): k.e(extra[2+i])
        if n == 7: k.e(f"s_sub_u32 s{sIT}, s{sIT}, 1\n{last}\ns_cmp_lg_u32 s{sIT}, 0\ns_cbranch_scc1 {Ll}")
        else: k.e(f"s_nop 0\n{last}")
    k.e("s_nop 0")
    for o in pv(7): k.e(o)
    k.e(f"""s_lshl_b32 s{sT0}, s{sQH}, 6
    v_and_b32 v{vT}, 31, v{vL}
    v_add_u32 v{vT}, s{sT0}, v{vT}
    s_lshl_b32 s{sT1}, s{sKQ}, 2
    v_lshl_add_u32 v{vLA}, v{vT}, 4, s{sT1}
    s_mul_i32 s{sT0}, s{sQH}, {4*6144}
    v_add_u32 v{vT2}, s{sT0}, v{vA}
    s_waitcnt vmcnt(0)
    s_nop 2
    s_mov_b64 exec, 0xffffffff00000000
    ds_write_b32 v{vLA}, v{O+12} offset:{LA}
    ds_write_b32 v{vLA}, v{O+28} offset:{LA+512}
    s_mov_b64 exec, -1""".replace("s_mov_b64 exec, 0xffffffff00000000", "s_mov_b32 exec_lo, 0"))
    Lj = k.label("Bj")
    for kq in range(4):
        Ln = k.label("Bw")
        if kq < 3: k.e(f"s_cmp_lg_u32 s{sKQ}, {kq}\ns_cbranch_scc1 {Ln}")
        for gi in range(4):
            if gi == kq: continue
            sl = kq if kq < gi else kq - 1
            for h in range(2): k.e(f"ds_write_b128 v{vT2}, {v(O+8*gi+4*h,4)} offset:{RD + gi*6144 + sl*2048 + h*1024}")
        for r in range(8): k.e(f"v_mov_b32 v{S+r}, v{O+8*kq+r}")
        if kq < 3: k.e(f"s_branch {Lj}\n{Ln}:")
    k.e(f"""{Lj}:
    s_mul_i32 s{sT0}, s{sWAVE}, 6144
    v_add_u32 v{vT2}, s{sT0}, v{vA}
    s_lshr_b32 s{sT1}, s{sKQ}, 1
    s_lshl_b32 s{sT1}, s{sT1}, 9
    v_lshl_add_u32 v{vLA}, v{vT}, 4, s{sT1}
    s_waitcnt lgkmcnt(0)
    s_barrier
    ds_read_b128 {v(P,4)}, v{vA} offset:{LA}
    ds_read_b128 {v(P+4,4)}, v{vA} offset:{LA+1024}
    ds_read_b128 {v(P+8,4)}, v{vLA} offset:{LA}""")
    for i in range(6): k.e(f"ds_read_b128 {v(S+8+4*i,4)}, v{vT2} offset:{RD + i*1024}")
    k.e("s_waitcnt lgkmcnt(6)")
    for b in (P, P+4, P+8): k.e(f"v_add_f32 v{b}, v{b}, v{b+1}\nv_add_f32 v{b+2}, v{b+2}, v{b+3}\nv_add_f32 v{b}, v{b}, v{b+2}")
    Lfb, Lok = k.label("Bfb"), k.label("Bok")
    k.e(f"""v_rcp_f32 v{P+8}, v{P+8}
    v_mov_b32 v{vT}, {hex(f2u(2.0**-64))}
    v_mov_b32 v{vT2}, {hex(f2u(2.0**64))}
    v_cmp_nle_f32 vcc, v{vT}, v{P}
    v_cmp_nle_f32 s[62:63], v{vT}, v{P+4}
    v_cmp_nge_f32 s[64:65], v{vT2}, v{P}
    v_cmp_nge_f32 s[66:67], v{vT2}, v{P+4}
    s_nop 0
    s_or_b64 vcc, vcc, s[62:63]
    s_or_b64 s[64:65], s[64:65], s[66:67]
    s_or_b64 vcc, vcc, s[64:65]
    s_cbranch_scc0 {Lok}
    s_cmp_eq_u32 s{sPASS}, 0
    s_cbranch_scc1 {Lfb}
    {Lok}:
    s_waitcnt lgkmcnt(0)""")
    for r in range(8): k.e(f"v_add_f32 v{S+r}, v{S+r}, v{S+8+r}\nv_add_f32 v{S+16+r}, v{S+16+r}, v{S+24+r}")
    for r in range(8): k.e(f"v_add_f32 v{S+r}, v{S+r}, v{S+16+r}")
    for r in range(8): k.e(f"v_mul_f32 v{S+r}, v{S+r}, v{P+8}")
    k.e(f"""s_and_b32 s{sT1}, s{sKQ}, 1
    s_mul_i32 s{sT2}, s{sT1}, 32
    s_sub_u32 s{sT2}, 63, s{sT2}
    v_cmp_lt_u32 vcc, s{sT2}, v{vL}""")
    for r in range(4): k.e(f"v_cvt_pk_bf16_f32 v{P+r}, v{S+2*r}, v{S+2*r+1}")
    k.e(f"""v_cndmask_b32 v{P+2}, v{P+2}, 0, vcc
    v_cndmask_b32 v{P+3}, v{P+3}, 0, vcc
    s_lshl_b32 s{sT0}, s{sJ}, 2
    s_lshr_b32 s{sT2}, s{sWAVE}, 1
    s_add_u32 s{sT0}, s{sT0}, s{sT2}
    s_lshl_b32 s{sT0}, s{sT0}, 4
    s_add_u32 s{sT0}, s{sT0}, s{sG}
    s_lshl_b32 s{sT0}, s{sT0}, 1
    s_add_u32 s{sT0}, s{sT0}, s{sT1}
    s_lshl_b32 s{sT0}, s{sT0}, 10
    s_add_u32 s{sT0}, s{sT0}, {OF}
    buffer_store_dwordx4 {v(P,4)}, v{vA}, s[{sWS}:{sWS+3}], s{sT0} offen {ST}""")
    Lend = k.label("Bend"); k.e(f"s_branch {Lend}")
    M = KV + 16
    k.e(f"{Lfb}:\ns_waitcnt lgkmcnt(0)\ns_barrier\ns_mov_b32 s{sPASS}, 1\ns_mov_b32 s{sIT}, 16")
    kvbase()
    k.e(f"v_mov_b32 v{M}, 0xff800000\nv_mov_b32 v{M+1}, 0xff800000")
    Lf = k.label("Bfl"); k.e(Lf + ":")
    for o in ld(0)[:2]: k.e(o)
    k.e(f"s_add_u32 s{sKV}, s{sKV}, 4096\ns_waitcnt vmcnt(0)")
    for o in qk(0) + qk(1): k.e(o)
    k.e("s_nop 7\ns_nop 7")
    for j in range(2):
        for r in range(0, 16, 2): k.e(f"v_max3_f32 v{M+j}, v{M+j}, v{S+16*j+r}, v{S+16*j+r+1}")
    k.e(f"s_sub_u32 s{sIT}, s{sIT}, 1\ns_cmp_lg_u32 s{sIT}, 0\ns_cbranch_scc1 {Lf}")
    for j in range(2):
        k.e(f"v_mov_b32 v{M+2}, v{M+j}\ns_nop 1\nv_permlane32_swap_b32 v{M+j}, v{M+2}\ns_nop 1\nv_max_f32 v{M+j}, v{M+j}, v{M+2}")
    k.e(f"""s_lshl_b32 s{sT0}, s{sQH}, 6
    v_and_b32 v{vT}, 31, v{vL}
    v_add_u32 v{vT}, s{sT0}, v{vT}
    v_lshlrev_b32 v{vT}, 4, v{vT}
    s_lshl_b32 s{sT1}, s{sKQ}, 2
    v_add_u32 v{vLA}, s{sT1}, v{vT}
    ds_write_b32 v{vLA}, v{M} offset:{LA}
    ds_write_b32 v{vLA}, v{M+1} offset:{LA+512}
    s_waitcnt lgkmcnt(0)
    s_barrier
    ds_read_b128 {v(S,4)}, v{vT} offset:{LA}
    ds_read_b128 {v(S+4,4)}, v{vT} offset:{LA+512}
    v_cmp_lt_u32 vcc, 31, v{vL}
    s_waitcnt lgkmcnt(0)
    s_barrier""")
    for j in range(2):
        b = S+4*j; h, m_, l_ = S+8, S+9, S+10
        k.e(f"""v_max3_f32 v{b}, v{b}, v{b+1}, v{b+2}
        v_max_f32 v{b}, v{b}, v{b+3}
        v_sub_f32 v{b}, 0, v{b}
        v_and_b32 v{h}, 0xffff0000, v{b}
        v_sub_f32 v{b}, v{b}, v{h}
        v_and_b32 v{m_}, 0xffff0000, v{b}
        v_sub_f32 v{b}, v{b}, v{m_}
        v_lshrrev_b32 v{l_}, 16, v{b}
        v_lshrrev_b32 v{h}, 16, v{h}
        v_or_b32 v{h}, v{h}, v{m_}
        v_cndmask_b32 v{Q+8*j+6}, v{Q+8*j+6}, v{h}, vcc
        v_cndmask_b32 v{Q+8*j+7}, v{Q+8*j+7}, v{l_}, vcc""")
    k.e(f"s_branch {Lmain}\n{Lend}:")
    return RD + 8*6144

def div14(k, vq, vr, vg, t):
    k.e(f"v_mul_u32_u24 v{vq}, 4682, v{vg}\nv_lshrrev_b32 v{vq}, 16, v{vq}\nv_mul_u32_u24 v{t}, 14, v{vq}\nv_sub_u32 v{vr}, v{vg}, v{t}")

def tr_addr(k, vd, t, pitch, nbstep):
    k.e(f"""v_bfe_u32 v{t}, v{vL}, 2, 2
    v_lshrrev_b32 v{vd}, 5, v{vL}
    v_lshl_add_u32 v{t}, v{vd}, 2, v{t}
    v_mul_u32_u24 v{vd}, {pitch}, v{t}
    v_bfe_u32 v{t}, v{vL}, 4, 1
    v_mul_u32_u24 v{t}, {nbstep}, v{t}
    v_add_u32 v{vd}, v{vd}, v{t}
    v_and_b32 v{t}, 3, v{vL}
    v_lshl_add_u32 v{vd}, v{t}, 3, v{vd}""")

def phaseC(k):
    WO, OB, RD = 0, 101376, 101376 + 32768
    vA, vT, vT2, vWa, vWr, vXa = 2, 3, 4, 5, 6, 7
    XR, ACC, WF, OFR = 8, 16, 32, 96
    sTT, sNQ, sNT, sKH = 36, 37, 38, 39
    srd(k, sX, 0, 2048*896); srd(k, sW, 2, 448*896)
    k.e(f"""v_lshlrev_b32 v{vA}, 4, v{vL}
    s_lshr_b32 s{sTT}, s{sJ}, 2
    s_lshl_b32 s{sT0}, s{sG}, 2
    s_add_u32 s{sTT}, s{sTT}, s{sT0}
    s_and_b32 s{sNQ}, s{sJ}, 3
    s_and_b32 s{sNT}, s{sWAVE}, 3
    s_lshr_b32 s{sKH}, s{sWAVE}, 2
    s_lshl_b32 s{sT0}, s{sTT}, 15
    s_lshl_b32 s{sT1}, s{sWAVE}, 12
    s_add_u32 s{sT0}, s{sT0}, s{sT1}
    s_add_u32 s{sT0}, s{sT0}, {OF}
    s_add_u32 m0, s{sT1}, {OB}
    s_nop 0""")
    for i in range(4): k.e(f"buffer_load_dwordx4 v{vA}, s[{sWS}:{sWS+3}], s{sT0} offen offset:{1024*i} lds")
    k.e(f"""v_and_b32 v{vT}, 31, v{vL}
    v_mul_u32_u24 v{vXa}, 896, v{vT}
    v_lshrrev_b32 v{vT}, 5, v{vL}
    v_lshl_add_u32 v{vXa}, v{vT}, 3, v{vXa}
    s_mul_i32 s{sT0}, s{sTT}, {32*896}
    s_mul_i32 s{sT2}, s{sNQ}, 224
    s_add_u32 s{sT0}, s{sT0}, s{sT2}
    s_lshl_b32 s{sT1}, s{sNT}, 6
    s_add_u32 s{sT0}, s{sT0}, s{sT1}
    s_lshl_b32 s{sT1}, s{sKH}, 5
    s_add_u32 s{sT0}, s{sT0}, s{sT1}
    buffer_load_dwordx2 {v(XR,2)}, v{vXa}, s[{sX}:{sX+3}], s{sT0} offen
    buffer_load_dwordx2 {v(XR+2,2)}, v{vXa}, s[{sX}:{sX+3}], s{sT0} offen offset:16""")
    Ls = k.label("Cnw")
    k.e(f"s_lshl_b32 s{sT0}, s{sWAVE}, 6\nv_add_u32 v{vT}, s{sT0}, v{vL}")
    div14(k, vT2, vT, vT, vWa)
    k.e(f"v_mul_u32_u24 v{vWa}, 896, v{vT2}\nv_lshl_add_u32 v{vWa}, v{vT}, 4, v{vWa}\ns_lshl_b32 s{sT1}, s{sWAVE}, 10")
    k.e(f"s_cmp_eq_u32 s{sWAVE}, 7\ns_cbranch_scc1 {Ls}")
    for p in range(14):
        k.e(f"s_add_u32 m0, s{sT1}, {WO + p*7168}\ns_add_u32 s{sT0}, s{sT2}, {p*32*896}")
        dma(k, vWa, sW, f"s{sT0}")
    Lz = k.label("Cz")
    k.e(f"s_branch {Lz}\n{Ls}:")
    for r in range(4): k.e(f"v_mov_b32 v{ACC+r}, 0")
    k.e(f"v_add_u32 v{vT}, {WO + 448*224}, v{vA}\nds_write_b128 v{vT}, {v(ACC,4)}\n{Lz}:")
    tr_addr(k, vWr, vT, 224, 32)
    k.e(f"""s_mul_i32 s{sT0}, s{sKH}, {8*28*224}
    s_lshl_b32 s{sT1}, s{sNT}, 6
    s_add_u32 s{sT0}, s{sT0}, s{sT1}
    v_add_u32 v{vWr}, s{sT0}, v{vWr}
    s_lshl_b32 s{sT0}, s{sKH}, 14
    s_add_u32 s{sT0}, s{sT0}, {OB}
    v_add_u32 v{vT2}, s{sT0}, v{vA}
    s_waitcnt vmcnt(0) lgkmcnt(0)
    s_barrier""")
    def reads(i):
        k.e(f"ds_read_b128 {v(OFR+4*i,4)}, v{vT2} offset:{i*1024}")
        for j in range(2): k.e(f"ds_read_b64_tr_b16 {v(WF+4*i+2*j,2)}, v{vWr} offset:{WO + ((i>>1)*28 + (i&1)*16 + 8*j)*224}")
    for i in range(5): reads(i)
    for i in range(16):
        k.e(f"s_waitcnt lgkmcnt({min(12, 3*(15-i))})")
        k.e(f"{MF32} {v(ACC,16)}, {v(WF+4*i,4)}, {v(OFR+4*i,4)}, {'0' if i == 0 else v(ACC,16)}")
        if i + 5 < 16: reads(i+5)
    L1, L2 = k.label("Ck1"), k.label("Ckj")
    k.e(f"""s_xor_b32 s{sT0}, s{sWAVE}, 4
    s_lshl_b32 s{sT0}, s{sT0}, 11
    s_add_u32 s{sT0}, s{sT0}, {RD}
    v_add_u32 v{vT}, s{sT0}, v{vA}
    s_lshl_b32 s{sT0}, s{sWAVE}, 11
    s_add_u32 s{sT0}, s{sT0}, {RD}
    v_add_u32 v{vT2}, s{sT0}, v{vA}
    s_nop 3
    s_cmp_eq_u32 s{sKH}, 1
    s_cbranch_scc1 {L1}
    ds_write_b128 v{vT}, {v(ACC+8,4)}
    ds_write_b128 v{vT}, {v(ACC+12,4)} offset:1024
    s_branch {L2}
    {L1}:
    ds_write_b128 v{vT}, {v(ACC,4)}
    ds_write_b128 v{vT}, {v(ACC+4,4)} offset:1024
    s_waitcnt lgkmcnt(0)""")
    for r in range(8): k.e(f"v_mov_b32 v{ACC+r}, v{ACC+8+r}")
    k.e(f"{L2}:")
    for r in range(4): k.e(f"v_lshlrev_b32 v{WF+2*r}, 16, v{XR+r}\nv_and_b32 v{WF+2*r+1}, 0xffff0000, v{XR+r}")
    for r in range(8): k.e(f"v_add_f32 v{ACC+r}, v{ACC+r}, v{WF+r}")
    Le = k.label("Cend")
    k.e(f"""s_mul_i32 s{sT0}, s{sTT}, 28
    s_mul_i32 s{sT1}, s{sNQ}, 7
    s_add_u32 s{sT0}, s{sT0}, s{sT1}
    s_lshl_b32 s{sT1}, s{sNT}, 1
    s_add_u32 s{sT0}, s{sT0}, s{sT1}
    s_add_u32 s{sT0}, s{sT0}, s{sKH}
    s_lshl_b32 s{sT0}, s{sT0}, 10
    s_add_u32 s{sT0}, s{sT0}, {HF}
    s_waitcnt lgkmcnt(0)
    s_barrier
    ds_read_b128 {v(WF,4)}, v{vT2}
    ds_read_b128 {v(WF+4,4)}, v{vT2} offset:1024
    s_cmp_eq_u32 s{sWAVE}, 7
    s_waitcnt lgkmcnt(0)
    s_cbranch_scc1 {Le}""")
    for r in range(8): k.e(f"v_add_f32 v{ACC+r}, v{ACC+r}, v{WF+r}")
    for r in range(4): k.e(f"v_cvt_pk_bf16_f32 v{XR+r}, v{ACC+2*r}, v{ACC+2*r+1}")
    k.e(f"buffer_store_dwordx4 {v(XR,4)}, v{vA}, s[{sWS}:{sWS+3}], s{sT0} offen {ST}\n{Le}:")
    return RD + 16384

def phaseD(k):
    SLOT, UP, NS = 28800, 14336+128, 5
    EX = SLOT*NS
    vA, vT, vT2, vWr, vONE, vS, vSS, vWa, vC = 2, 3, 4, 5, 6, 7, 8, 10, 14
    WF, ACC, XF = 20, 52, 116
    sTT, sWO, sWM, sXO = 36, 37, 38, 39
    Lu, Lj = k.label("Dup"), k.label("Dj")
    k.e(f"s_and_b32 s{sTT}, s{sWAVE}, 3\ns_bitcmp1_b32 s{sWAVE}, 0\ns_cbranch_scc1 {Lu}")
    srd(k, sW, 4, 448*3584); k.e(f"s_mov_b32 s{sWM}, 0\ns_branch {Lj}\n{Lu}:")
    srd(k, sW, 5, 448*3584); k.e(f"s_mov_b32 s{sWM}, {UP}\n{Lj}:")
    k.e(f"""v_lshlrev_b32 v{vA}, 4, v{vL}
    s_lshr_b32 s{sT0}, s{sTT}, 1
    s_mul_i32 s{sT1}, s{sT0}, 7168
    s_add_u32 s{sWM}, s{sWM}, s{sT1}
    s_mul_i32 s{sWO}, s{sT0}, {32*3584}
    s_mul_i32 s{sT1}, s{sJ}, 224
    s_add_u32 s{sWO}, s{sWO}, s{sT1}
    s_lshl_b32 s{sT0}, s{sG}, 2
    s_add_u32 s{sT0}, s{sT0}, s{sTT}
    s_mul_i32 s{sXO}, s{sT0}, {28*1024}
    s_add_u32 s{sXO}, s{sXO}, {HF}""")
    def body(tiles, ins, stats):
        nt = len(tiles); per = len(ins) + 4
        for a_, i in enumerate(ins):
            k.e(f"v_add_u32 v{vT}, {64*i}, v{vL}")
            div14(k, vT2, vT, vT, vWa+a_)
            k.e(f"v_mul_u32_u24 v{vWa+a_}, 3584, v{vT2}\nv_lshl_add_u32 v{vWa+a_}, v{vT}, 4, v{vWa+a_}")
        def issue(c):
            k.e(f"s_add_u32 s{sT0}, s{sWO}, {c*64*3584}")
            for a_, i in enumerate(ins):
                k.e(f"s_add_u32 m0, s{sWM}, {(c % NS)*SLOT + i*1024}\ns_nop 0")
                dma(k, vWa+a_, sW, f"s{sT0}")
            k.e(f"s_add_u32 s{sT0}, s{sXO}, {c*4096}")
            for s_ in range(4): k.e(f"buffer_load_dwordx4 {v(XF+16*c+4*s_,4)}, v{vA}, s[{sWS}:{sWS+3}], s{sT0} offen offset:{1024*s_}")
        for c in range(NS): issue(c)
        tr_addr(k, vWr, vT, 224, UP)
        k.e(f"v_mov_b32 v{vONE}, 0x3f803f80\nv_mov_b32 v{vS}, 0\nv_mov_b32 v{vSS}, 0")
        for i in range(nt): k.e(f"v_mov_b32 v{vC+i}, 0")
        def reads(s_):
            for i, t in enumerate(tiles):
                for j in range(2): k.e(f"ds_read_b64_tr_b16 {v(WF+16*(s_&1)+4*i+2*j,2)}, v{vWr} offset:{(16*s_+8*j)*224 + 32*t}")
        for c in range(7):
            k.e(f"s_waitcnt vmcnt({[4,3,3,3,2,1,0][c]*per})\ns_barrier")
            reads(0)
            if 1 <= c <= 2: issue(c+4)
            for s_ in range(4):
                xf = XF+16*c+4*s_
                k.e("s_waitcnt lgkmcnt(0)")
                for i in range(nt):
                    acc = v(ACC+16*i,16)
                    k.e(f"{MF32} {acc}, {v(WF+16*(s_&1)+4*i,4)}, {v(xf,4)}, {'0' if c == 0 and s_ == 0 else acc}")
                    if i == 0 and s_ < 3: reads(s_+1)
                if stats:
                    for r in range(4): k.e(f"v_dot2_f32_bf16 v{vS}, v{xf+r}, v{vONE}, v{vS}\nv_dot2_f32_bf16 v{vSS}, v{xf+r}, v{xf+r}, v{vSS}")
                Ls = k.label("cs")
                k.e(f"s_cmp_lg_u32 s{sTT}, {s_}\ns_cbranch_scc1 {Ls}")
                for r in range(4):
                    for i in range(nt): k.e(f"v_dot2_f32_bf16 v{vC+i}, v{WF+16*(s_&1)+4*i+r}, v{vONE}, v{vC+i}")
                k.e(Ls + ":")
            if c < 6: k.e(f"v_add_u32 v{vWr}, {(((c+1) % NS - c % NS)*SLOT) & 0xffffffff}, v{vWr}")
        k.e(f"s_lshl_b32 s{sT0}, s{sTT}, 2\ns_add_u32 s{sT0}, s{sT0}, {EX+1024}\nv_add_u32 v{vT}, s{sT0}, v{vA}\ns_nop 0")
        for i, t in enumerate(tiles): k.e(f"ds_write_b32 v{vT}, v{vC+i} offset:{t*1024}")
        k.e(f"v_and_b32 v{vT2}, 31, v{vL}\ns_lshl_b32 s{sT0}, s{sTT}, 7\ns_add_u32 s{sT0}, s{sT0}, {EX}\nv_lshl_add_u32 v{vT2}, v{vT2}, 2, s{sT0}")
        if stats:
            ln_stats(k, vS, vSS, vWr)
            k.e(f"ds_write_b32 v{vT2}, v{vS}\nds_write_b32 v{vT2}, v{vSS} offset:512")
        k.e(f"v_add_u32 v{vT}, {EX+1024}, v{vA}\ns_waitcnt lgkmcnt(0)\ns_barrier")
        for i, t in enumerate(tiles): k.e(f"ds_read_b128 {v(WF+4*i,4)}, v{vT} offset:{t*1024}")
        if not stats: k.e(f"ds_read_b32 v{vS}, v{vT2}\nds_read_b32 v{vSS}, v{vT2} offset:512")
        k.e(f"""s_lshl_b32 s{sT0}, s{sG}, 2
        s_add_u32 s{sT0}, s{sT0}, s{sTT}
        s_mul_i32 s{sT0}, s{sT0}, 112
        s_mul_i32 s{sT1}, s{sJ}, 7
        s_add_u32 s{sT0}, s{sT0}, s{sT1}
        s_lshl_b32 s{sT0}, s{sT0}, 10
        s_add_u32 s{sT0}, s{sT0}, {MF + tiles[0]*1024}
        s_waitcnt lgkmcnt(0)""")
        for i in range(nt):
            b = WF+4*i
            k.e(f"v_add_f32 v{b}, v{b}, v{b+1}\nv_add_f32 v{b+2}, v{b+2}, v{b+3}\nv_add_f32 v{b}, v{b}, v{b+2}")
        k.e(f"v_mul_f32 v{vSS}, v{vSS}, v{vSS}\ns_nop 0")
        for i in range(nt): k.e(f"v_mfma_f32_32x32x2_f32 {v(ACC+16*i,16)}, v{WF+4*i}, v{vS}, {v(ACC+16*i,16)}")
        k.e("s_nop 7\ns_nop 7")
        for i in range(nt):
            b = ACC+16*i
            for r in range(8): k.e(f"v_max_f32 v{b+r}, 0, v{b+r}\nv_mul_f32 v{b+8+r}, v{b+8+r}, v{vSS}")
            for r in range(8): k.e(f"v_mul_f32 v{b+r}, v{b+r}, v{b+8+r}")
            for r in range(4): k.e(f"v_cvt_pk_bf16_f32 v{XF+4*i+r}, v{b+2*r}, v{b+2*r+1}")
            k.e(f"buffer_store_dwordx4 {v(XF+4*i,4)}, v{vA}, s[{sWS}:{sWS+3}], s{sT0} offen offset:{1024*i} {ST}")
    Lq, Le = k.label("Dq"), k.label("Dend")
    k.e(f"s_cmp_ge_u32 s{sWAVE}, 4\ns_cbranch_scc1 {Lq}")
    body([0,1,2,3], [4,5,6], False)
    k.e(f"s_branch {Le}\n{Lq}:")
    body([4,5,6], [0,1,2,3], True)
    k.e(Le + ":")
    return EX + 1024 + 7168

def phaseE(k):
    SLOT, NS = 32768, 4
    vA, vT, vT2, vWa, vWr, vOa = 2, 3, 4, 5, 6, 8
    HR, WF, ACC, XF = 12, 16, 32, 64
    sTT, sKQ, sWO, sWM, sXO, sNB = 36, 37, 38, 39, 60, 61
    Le = k.label("Eend")
    k.e(f"s_cmp_ge_u32 s{sJ}, 14\ns_cbranch_scc1 {Le}")
    srd(k, sW, 6, 1792*896); srd(k, sOUT, 7, 2048*896)
    k.e(f"""v_lshlrev_b32 v{vA}, 4, v{vL}
    s_and_b32 s{sKQ}, s{sWAVE}, 3
    s_lshr_b32 s{sT2}, s{sWAVE}, 2
    s_lshr_b32 s{sNB}, s{sJ}, 1
    s_and_b32 s{sT0}, s{sJ}, 1
    s_lshl_b32 s{sTT}, s{sG}, 1
    s_add_u32 s{sTT}, s{sTT}, s{sT0}
    s_lshl_b32 s{sTT}, s{sTT}, 1
    s_add_u32 s{sTT}, s{sTT}, s{sT2}
    s_mul_i32 s{sXO}, s{sTT}, 112
    s_mul_i32 s{sT0}, s{sKQ}, 28
    s_add_u32 s{sXO}, s{sXO}, s{sT0}
    s_lshl_b32 s{sXO}, s{sXO}, 10
    s_add_u32 s{sXO}, s{sXO}, {MF}
    s_mul_i32 s{sWO}, s{sKQ}, {448*896}
    s_mul_i32 s{sT0}, s{sT2}, {32*896}
    s_add_u32 s{sWO}, s{sWO}, s{sT0}
    s_lshl_b32 s{sT0}, s{sNB}, 7
    s_add_u32 s{sWO}, s{sWO}, s{sT0}
    s_lshl_b32 s{sWM}, s{sKQ}, 13
    s_lshl_b32 s{sT0}, s{sT2}, 12
    s_add_u32 s{sWM}, s{sWM}, s{sT0}
    v_lshrrev_b32 v{vT}, 3, v{vL}
    v_mul_u32_u24 v{vWa}, 896, v{vT}
    v_bfe_u32 v{vT}, v{vL}, 4, 1
    v_lshlrev_b32 v{vT}, 2, v{vT}
    v_and_b32 v{vT2}, 7, v{vL}
    v_xor_b32 v{vT}, v{vT}, v{vT2}
    v_lshl_add_u32 v{vWa}, v{vT}, 4, v{vWa}
    s_mul_i32 s{sT0}, s{sTT}, 28
    s_lshl_b32 s{sT1}, s{sNB}, 2
    s_add_u32 s{sT0}, s{sT0}, s{sT1}
    s_add_u32 s{sT0}, s{sT0}, s{sKQ}
    s_lshl_b32 s{sT0}, s{sT0}, 10
    s_add_u32 s{sT0}, s{sT0}, {HF}
    buffer_load_dwordx4 {v(HR,4)}, v{vA}, s[{sWS}:{sWS+3}], s{sT0} offen""")
    def issue(c):
        for i in range(4):
            k.e(f"s_add_u32 m0, s{sWM}, {(c % NS)*SLOT + i*1024}\ns_add_u32 s{sT0}, s{sWO}, {(c*64 + i*8)*896}")
            dma(k, vWa, sW, f"s{sT0}")
        k.e(f"s_add_u32 s{sT0}, s{sXO}, {c*4096}")
        for s_ in range(4): k.e(f"buffer_load_dwordx4 {v(XF+16*c+4*s_,4)}, v{vA}, s[{sWS}:{sWS+3}], s{sT0} offen offset:{1024*s_}")
    for c in range(NS): issue(c)
    tr_addr(k, vWr, vT, 128, 32)
    k.e(f"""v_bfe_u32 v{vT}, v{vL}, 3, 1
    v_lshl_add_u32 v{vWr}, v{vT}, 6, v{vWr}
    s_lshl_b32 s{sT0}, s{sKQ}, 13
    v_add_u32 v{vWr}, s{sT0}, v{vWr}
    v_xor_b32 v{vWr+1}, 64, v{vWr}
    v_and_b32 v{vT}, 31, v{vL}
    v_mul_u32_u24 v{vOa}, 896, v{vT}
    v_lshrrev_b32 v{vT}, 5, v{vL}
    v_lshl_add_u32 v{vOa}, v{vT}, 4, v{vOa}""")
    def reads(s_):
        for i in range(2):
            for j in range(2): k.e(f"ds_read_b64_tr_b16 {v(WF+8*(s_&1)+4*i+2*j,2)}, v{vWr+i} offset:{(16*s_+8*j)*128}")
    for c in range(7):
        k.e(f"s_waitcnt vmcnt({[3,2,2,2,2,1,0][c]*8})\ns_barrier")
        reads(0); reads(1)
        if 1 <= c <= 3: issue(c+3)
        for s_ in range(4):
            k.e(f"s_waitcnt lgkmcnt({4 if s_ < 3 else 0})")
            for i in range(2):
                acc = v(ACC+16*i,16)
                k.e(f"{MF32} {acc}, {v(WF+8*(s_&1)+4*i,4)}, {v(XF+16*c+4*s_,4)}, {'0' if c == 0 and s_ == 0 else acc}")
            if s_ < 2: reads(s_+2)
        if c < 6:
            for i in range(2): k.e(f"v_add_u32 v{vWr+i}, {(((c+1) % NS - c % NS)*SLOT) & 0xffffffff}, v{vWr+i}")
    k.e(f"s_lshr_b32 s{sT2}, s{sWAVE}, 2\ns_mul_i32 s{sT0}, s{sT2}, {4*6144}\nv_add_u32 v{vT2}, s{sT0}, v{vA}\ns_nop 7")
    Lj = k.label("Ej")
    for kq in range(4):
        Ln = k.label("Ew")
        if kq < 3: k.e(f"s_cmp_lg_u32 s{sKQ}, {kq}\ns_cbranch_scc1 {Ln}")
        for gi in range(4):
            if gi == kq: continue
            sl = kq if kq < gi else kq - 1
            for h in range(2): k.e(f"ds_write_b128 v{vT2}, {v(ACC+8*gi+4*h,4)} offset:{gi*6144 + sl*2048 + h*1024}")
        for r in range(8): k.e(f"v_mov_b32 v{XF+r}, v{ACC+8*kq+r}")
        if kq < 3: k.e(f"s_branch {Lj}\n{Ln}:")
    k.e(f"{Lj}:\ns_mul_i32 s{sT0}, s{sWAVE}, 6144\nv_add_u32 v{vT2}, s{sT0}, v{vA}")
    for r in range(4): k.e(f"v_lshlrev_b32 v{WF+2*r}, 16, v{HR+r}\nv_and_b32 v{WF+2*r+1}, 0xffff0000, v{HR+r}")
    for r in range(8): k.e(f"v_add_f32 v{XF+r}, v{XF+r}, v{WF+r}")
    k.e(f"""s_mul_i32 s{sT0}, s{sTT}, {32*896}
    s_lshl_b32 s{sT1}, s{sNB}, 7
    s_add_u32 s{sT0}, s{sT0}, s{sT1}
    s_lshl_b32 s{sT1}, s{sKQ}, 5
    s_add_u32 s{sT0}, s{sT0}, s{sT1}
    s_waitcnt lgkmcnt(0)
    s_barrier""")
    for i in range(6): k.e(f"ds_read_b128 {v(XF+8+4*i,4)}, v{vT2} offset:{i*1024}")
    k.e("s_waitcnt lgkmcnt(0)")
    for r in range(8): k.e(f"v_add_f32 v{XF+r}, v{XF+r}, v{XF+8+r}\nv_add_f32 v{XF+16+r}, v{XF+16+r}, v{XF+24+r}")
    for r in range(8): k.e(f"v_add_f32 v{XF+r}, v{XF+r}, v{XF+16+r}")
    for r in range(4): k.e(f"v_cvt_pk_bf16_f32 v{HR+r}, v{XF+2*r}, v{XF+2*r+1}")
    k.e(f"""s_nop 1
    v_permlane32_swap_b32 v{HR}, v{HR+2}
    v_permlane32_swap_b32 v{HR+1}, v{HR+3}
    buffer_store_dwordx4 {v(HR,4)}, v{vOa}, s[{sOUT}:{sOUT+3}], s{sT0} offen
    {Le}:""")
    return SLOT*NS

def build_multi(extra_empty=0):
    ks, la = [], []
    for nm, fn, nv in (("pa", phaseA, 112), ("pb", phaseB, 168), ("pc", phaseC, 160), ("pd", phaseD, 228), ("pe", phaseE, 176)):
        k = K(nm + "_kernel"); prolog(k); lds = fn(k); k.e("s_endpgm")
        ks.append(k.text(nv)); la.append((nm + "_kernel", 256, 512, lds))
    if extra_empty:
        k = K("pz_kernel"); k.e("s_endpgm"); ks.append(k.text(8))
        la += [("pz_kernel", 256, 512, 0)] * extra_empty
    return build_file(la, ks)

if __name__ == "__main__":
    import sys
    open("sequential_preLN__mha_block__glu_gated_reglu__prompt.s", "w").write(build_multi())
    open("multi_e4.s", "w").write(build_multi(4))
```

```python
from asmlib import *
import math, struct
def f2u(x): return struct.unpack("<I", struct.pack("<f", x))[0]
KVF, OF, HF, MF, FLG = 0x200000, 0x600000, 0x800000, 0xA00000, 0x1200000
HELLO, FA, FCS, FB, FC, FD = FLG+0x1000, FLG+0x2000, FLG+0x4000, FLG+0x5000, FLG+0x8000, FLG+0xB000
CSP, STP, TS, WSREC = 0x1240000, 0x12C0000, 0x1300000, 0x1400000
sX, sW, sW2, sWS = 8, 12, 16, 20
sWAVE, sG, sJ, sT0, sT1, sT2, sT3, sU = 28, 29, 30, 31, 32, 33, 34, 35
sNON, sSLOW, sCNT = 24, 25, 26
PTR = 40
vL, vA, vT, vT2 = 1, 2, 3, 4
MF32 = "v_mfma_f32_32x32x16_bf16"; MF16 = "v_mfma_f32_16x16x32_bf16"
WS = f"s[{sWS}:{sWS+3}]"
NAME = "sequential_preLN__mha_block__glu_gated_reglu__prompt_kernel"
class O:
    stamp = False; clk = "s_memrealtime"
    xmap = True; ipf = 12; dbg = None; stOut = ""; wb = False; stO = ""; stH = ""; stM = "sc1"
    ldKV = "sc1"; force_slow = False; grp = ''; hpa = 0; mwarm = False; ord3 = True; early3 = True; dpre = '[(si,0),(sr,0),(si,1)]'; dplan = '[[(sr,1),(si,2)], [(dw,5),(cs,4),(sr,2),(si,3)], [(dw,6),(sr,3),(pc,0)], [(cs,5),(pc,1)], [(cs,6),(cw,0),(pc,2)], [(pc,3)], []]'; awarm = 1; stMn = 7; ests = 3; hcp = 2; cpf = []; c2late = True; csp = 0; hpd = 0; js = [1,1,2,10]; hset = 2; pres = 13; per = [0,0,0,5,5,5,5,5,5,5,5,6,6,6]; nojobs = False; late0 = 11; lates = 2; hprio = 2; exn = 2; dx0 = 4; ex0 = 3; pfgu = {2:12,3:13,4:15}; pfwd = []; apf = None; apos = 2; asig = 14
DSLOT, DUP = 28832, 14336+160
RD, LA, STG = 86528, 152064, 147456
OBUF, CSH = 115456, STG + 2048

def stamp(k, i, grp=""):
    if O.stamp and (i == 0 or grp == O.grp): k.e(f"{O.clk} s[{68+2*i}:{69+2*i}]")
def stamp_out(k):
    if not O.stamp: return
    k.e(f"s_waitcnt vmcnt(0)\n{O.clk} s[98:99]\ns_waitcnt lgkmcnt(0)")
    if O.dbg is not None:
        Lx = k.label("dbg")
        k.e(f"s_cmp_lg_u32 s2, 17\ns_cbranch_scc1 {Lx}\ns_cmp_lg_u32 s{sWAVE}, {O.dbg}\ns_cbranch_scc1 {Lx}\ns_mov_b64 exec, 1")
        srd(k, sX, 8, 256)
        for i in range(16): k.e(f"s_sub_u32 s3, s{68+2*i}, s68\nv_mov_b32 v4, s3\nbuffer_store_dword v4, off, s[{sX}:{sX+3}], 0 offset:{4*i}")
        k.e(Lx + ":")
        return
    k.e(f"s_lshl_b32 s3, s2, 3\ns_add_u32 s3, s3, s{sWAVE}\ns_lshl_b32 s3, s3, 6\ns_add_u32 s3, s3, {TS}\nv_mov_b32 v2, 0\ns_mov_b64 exec, 1")
    for j in range(4):
        for i in range(4): k.e(f"v_mov_b32 v{4+i}, s{68+2*(4*j+i)}")
        k.e(f"buffer_store_dwordx4 v[4:7], v2, {WS}, s3 offen offset:{16*j}\ns_nop 1")
def srd(k, d, slot, nbytes):
    k.e(f"s_mov_b32 s{d}, s{PTR+2*slot}\ns_mov_b32 s{d+1}, s{PTR+2*slot+1}\ns_mov_b32 s{d+2}, {nbytes}\ns_mov_b32 s{d+3}, 0x20000")
def dma(k, va, sr, m0base, m0off, sbase, soff, fl=""):
    k.e(f"s_add_u32 m0, s{m0base}, {m0off}\ns_add_u32 s{sT0}, s{sbase}, {soff}\nbuffer_load_dwordx4 v{va}, s[{sr}:{sr+3}], s{sT0} offen {fl} lds")
def lin(k, d, terms, const=0):
    first = True
    for r, m in terms:
        t = d if first else sT3
        k.e(f"s_mul_i32 s{t}, s{r}, {m}")
        if not first: k.e(f"s_add_u32 s{d}, s{d}, s{sT3}")
        first = False
    if const: k.e(f"s_add_u32 s{d}, s{d}, {const}")
def halfop(k, r, t, op="v_add_f32"):
    k.e(f"v_mov_b32 v{t}, v{r}\ns_nop 1\nv_permlane32_swap_b32 v{r}, v{t}\ns_nop 1\n{op} v{r}, v{r}, v{t}")
def ln_fin(k, vS, vSS):
    k.e(f"""v_mul_f32 v{vS}, {hex(f2u(-1.0/448))}, v{vS}
    v_mul_f32 v{vSS}, {hex(f2u(1.0/448))}, v{vSS}
    v_fma_f32 v{vSS}, -v{vS}, v{vS}, v{vSS}
    v_max_f32 v{vSS}, 0, v{vSS}
    v_add_f32 v{vSS}, {hex(f2u(1e-5))}, v{vSS}""")
def div14(k, vq, vr, vg, t):
    k.e(f"v_mul_u32_u24 v{vq}, 4682, v{vg}\nv_lshrrev_b32 v{vq}, 16, v{vq}\nv_mul_u32_u24 v{t}, 14, v{vq}\nv_sub_u32 v{vr}, v{vg}, v{t}")
def tr_addr(k, vd, t, pitch, nbstep, hfrows=4):
    k.e(f"""v_bfe_u32 v{t}, v{vL}, 2, 2
    v_lshrrev_b32 v{vd}, 5, v{vL}
    v_lshl_add_u32 v{t}, v{vd}, {int(math.log2(hfrows))}, v{t}
    v_mul_u32_u24 v{vd}, {pitch}, v{t}
    v_bfe_u32 v{t}, v{vL}, 4, 1
    v_mul_u32_u24 v{t}, {nbstep}, v{t}
    v_add_u32 v{vd}, v{vd}, v{t}
    v_and_b32 v{t}, 3, v{vL}
    v_lshl_add_u32 v{vd}, v{t}, 3, v{vd}""")
def signal(k, soff, local, wt=False, vm=0):
    k.e(f"v_mov_b32 v{vT}, s{sNON}\ns_waitcnt vmcnt({vm})\ns_mov_b64 exec, 1")
    if local:
        Ls, Lj = k.label("sl"), k.label("sj")
        k.e(f"""s_cmp_lg_u32 s{sSLOW}, 0
        s_cbranch_scc1 {Ls}
        buffer_store_dword v{vT}, off, {WS}, s{soff}
        s_branch {Lj}
        {Ls}:
        {"" if wt else "buffer_wbl2 sc1"}
        s_waitcnt vmcnt(0)
        buffer_store_dword v{vT}, off, {WS}, s{soff} sc1
        {Lj}:""")
    else: k.e(f"buffer_store_dword v{vT}, off, {WS}, s{soff} sc1")
    k.e("s_mov_b64 exec, -1")
def poll(k, va, soff, nl, vd=vT, mask=None):
    Lp, Ld = k.label("poll"), k.label("pd")
    k.e(f"s_mov_b32 exec_lo, {hex((1 << nl) - 1)}\ns_mov_b32 exec_hi, 0\ns_mov_b32 s{sCNT}, 0\n{Lp}:\nbuffer_load_dword v{vd}, v{va}, {WS}, s{soff} offen sc1\ns_add_u32 s{sCNT}, s{sCNT}, 1\ns_cmp_gt_u32 s{sCNT}, 0x40000\ns_waitcnt vmcnt(0)\ns_cbranch_scc1 {Ld}")
    if mask: k.e(f"v_xor_b32 v{vd}, s{sNON}, v{vd}\nv_cmp_lt_u32 vcc, {mask}, v{vd}")
    else: k.e(f"v_cmp_ne_u32 vcc, s{sNON}, v{vd}")
    k.e(f"s_cbranch_vccnz {Lp}\n{Ld}:")
    if not mask:
        Lf = k.label("pf")
        k.e(f"s_cmp_eq_u32 s{sSLOW}, 0\ns_cbranch_scc1 {Lf}\nbuffer_inv sc1\ns_waitcnt vmcnt(0)\n{Lf}:\ns_mov_b64 exec, -1")
def hello_check(k, sT1=sT1):
    k.e(f"v_lshlrev_b32 v{vT2}, 2, v{vL}"); lin(k, sT1, [(sG, 128)], HELLO)
    poll(k, vT2, sT1, 16, mask=15)
    k.e(f"s_getreg_b32 s{sT1}, hwreg(HW_REG_XCC_ID, 0, 4)\nv_cmp_ne_u32 vcc, s{sT1}, v{vT}\ns_nop 1\ns_cmp_lg_u64 vcc, 0\ns_cselect_b32 s{sSLOW}, 1, {1 if O.force_slow else 0}\ns_mov_b64 exec, -1")
def touch(k, sr, soff, n, stride=128):
    k.e(f"v_mul_u32_u24 v{vT2}, {stride}, v{vL}")
    for i in range(n):
        k.e(f"buffer_load_dword v71, v{vT2}, s[{sr}:{sr+3}], s{soff} offen sc1")
        if i < n-1: k.e(f"s_add_u32 s{soff}, s{soff}, {64*stride}")

def prolog(k):
    Lok = k.label("go")
    k.e(f"s_cmp_lt_u32 s2, 256\ns_cbranch_scc1 {Lok}\ns_endpgm\n{Lok}:")
    stamp(k, 0)
    k.e(f"""s_load_dwordx16 s[{PTR}:{PTR+15}], s[0:1], 0
    s_load_dwordx4 s[{PTR+16}:{PTR+19}], s[0:1], 64
    v_and_b32 v{vL}, 63, v0
    v_lshrrev_b32 v{vA}, 6, v0
    s_and_b32 s{sG}, s2, 7
    v_readfirstlane_b32 s{sWAVE}, v{vA}
    s_lshr_b32 s{sJ}, s2, 3
    s_lshr_b32 s{sT0}, s{sJ}, 4
    s_lshl_b32 s{sG}, s{sG}, 1
    s_add_u32 s{sG}, s{sG}, s{sT0}
    s_and_b32 s{sJ}, s{sJ}, 15
    s_and_b32 s{sU}, s{sWAVE}, 3
    v_lshlrev_b32 v{vA}, 4, v{vL}
    s_mov_b32 s{sSLOW}, 0""")
def ptrs(k):
    k.e(f"""s_waitcnt lgkmcnt(0)
    s_add_u32 s4, s{PTR+18}, {FLG}
    s_addc_u32 s5, s{PTR+19}, 0
    s_load_dword s{sNON}, s[4:5], 0""")
    srd(k, sWS, 9, WSREC); srd(k, sX, 0, 2048*896); srd(k, sW, 1, 448*2688)
def nonce(k):
    k.e(f"s_waitcnt lgkmcnt(0)\ns_mul_i32 s{sNON}, s{sNON}, 0x9E3779B1\ns_add_u32 s{sNON}, s{sNON}, 0x7F4A7C15")

ASLOT, AXB, ANS = 24576, 16384, 5
AWQ = 2*ASLOT; AEX = 154368; AQ = 155648; ACS = LA; ACQ = 78848
def HD(): return sG if O.xmap else sJ
def TB(): return sJ if O.xmap else sG
Q, OA, S, P, KVS, KV = 8, 140, 40, 72, (124, 88), 204
def B_zero(): return [f"v_mov_b32 v{r}, 0" for r in list(range(P+8, P+16)) + list(range(KVS[1]+8, KVS[1]+16)) + list(range(OA, OA+64))]
def A_main(k):
    vXr, vWr, vWq, SEL, SX, CS, SQ, TM = 8, 12, 13, 16, 20, 24, 36, 40
    vS, vSS, vONE = 5, 6, 7
    WF, ACC, PK, XF = 44, 76, 124, 140
    if O.ipf:
        k.e(f"""s_getpc_b64 s[4:5]
        L_k_pc:
        s_sub_u32 s4, s4, L_k_pc - {NAME}
        s_subb_u32 s5, s5, 0
        s_lshr_b32 s{sT2}, s2, 3
        s_lshl_b32 s{sT2}, s{sT2}, 2
        s_add_u32 s{sT2}, s{sT2}, s{sU}
        s_and_b32 s{sT2}, s{sT2}, 31
        s_mul_i32 s{sT2}, s{sT2}, {O.ipf*128}
        v_lshl_add_u32 v{vT2}, v{vL}, 7, s{sT2}
        v_min_u32 v{vT2}, L_k_end - {NAME} - 4, v{vT2}
        s_mov_b64 exec, {(1 << O.ipf) - 1}
        global_load_dword v255, v{vT2}, s[4:5]
        s_mov_b64 exec, -1""")
    k.e(f"""v_and_b32 v{vT}, 31, v{vL}
    s_lshl_b32 s{sT0}, s{sU}, 5
    v_add_u32 v{vT2}, s{sT0}, v{vT}
    v_lshlrev_b32 v{vT2}, 7, v{vT2}
    v_bfe_u32 v{vT}, v{vL}, 1, 3
    v_lshrrev_b32 v{vXr}, 5, v{vL}
    v_xor_b32 v{vT}, v{vT}, v{vXr}""")
    for s_ in range(4): k.e(f"v_xor_b32 v{vXr+s_}, {2*s_}, v{vT}\nv_lshl_add_u32 v{vXr+s_}, v{vXr+s_}, 4, v{vT2}")
    tr_addr(k, vWr, vS, 64, 32, 8)
    k.e(f"v_add_u32 v{vWq}, {AWQ}, v{vWr}\nv_mov_b32 v{vONE}, 0x3f803f80\nv_lshrrev_b32 v{vS}, 2, v{vL}\nv_xor_b32 v{vS}, v{vS}, v{vL}\nv_and_b32 v{vS}, 4, v{vS}\nv_cmp_eq_u32 vcc, 0, v{vS}")
    for r in range(4): k.e(f"v_mov_b32 v{SQ+r}, 0")
    for r in range(4): k.e(f"v_cndmask_b32 v{SEL+r}, 0, v{vONE}, vcc")
    ptrs(k)
    if O.awarm is not None:
        n = 7 - O.awarm
        k.e(f"s_lshl_b32 s{sT2}, s2, 2\ns_add_u32 s{sT2}, s{sT2}, s{sU}\nv_lshrrev_b32 v{vT}, 1, v{vL}\nv_and_b32 v{vT2}, 1, v{vL}\nv_mul_u32_u24 v{vT2}, 896, v{vT2}\nv_lshl_add_u32 v{vT2}, v{vT}, 7, v{vT2}")
        lin(k, sT1, [(sT2, 2*896)], O.awarm*128)
        k.e(f"s_mov_b64 exec, {(1 << 2*n) - 1}\nbuffer_load_dword v255, v{vT2}, s[{sX}:{sX+3}], s{sT1} offen\nv_lshlrev_b32 v{vT2}, 17, v{vL}")
        lin(k, sT1, [(sT2, 128)], O.awarm*64*2688)
        k.e(f"buffer_load_dword v255, v{vT2}, s[{sW}:{sW+3}], s{sT1} offen\ns_mov_b64 exec, -1")
    nonce(k)
    lin(k, sT1, [(sG, 128), (sJ, 4)], HELLO)
    Lh = k.label("hel")
    k.e(f"s_cmp_lg_u32 s{sU}, 0\ns_cbranch_scc1 {Lh}\ns_getreg_b32 s{sT0}, hwreg(HW_REG_XCC_ID, 0, 4)\ns_xor_b32 s{sT0}, s{sT0}, s{sNON}\nv_mov_b32 v{vS}, s{sT0}\ns_mov_b64 exec, 1\nbuffer_store_dword v{vS}, off, {WS}, s{sT1} sc1\ns_mov_b64 exec, -1\n{Lh}:")
    def reads(ks):
        s_ = ks & 3
        return [f"ds_read_b128 {v(XF+4*ks,4)}, v{vXr+s_}"] + [f"ds_read_b64_tr_b16 {v(WF+8*s_+4*t+2*j,2)}, v{vWr} offset:{AXB + t*4096 + s_*1024 + j*256}" for t in range(2) for j in range(2)]
    k.e("s_barrier")
    stamp(k, 1)
    for o in reads(0) + reads(1): k.e(o)
    for ks in range(28):
        s_ = ks & 3; c = ks >> 2; z = ks == 0; xf = v(XF+4*ks,4)
        if s_ == 2 and c < 6:
            k.e("s_waitcnt lgkmcnt(0)\ns_barrier")
            for r in range(5): k.e(f"v_add_u32 v{vXr+r}, {(((c+1) % ANS - c % ANS)*ASLOT) & 0xffffffff}, v{vXr+r}")
        elif not (s_ == 3 and c < 6): k.e(f"s_waitcnt lgkmcnt({5 if ks < 27 else 0})")
        rd = reads(ks+2) if ks < 26 else []; fill = []
        if ks == 26: k.e(f"v_add_u32 v{vXr}, {ACS}, v{vA}")
        if ks == 27: rd = ["s_barrier", f"ds_read_b128 {v(SEL+8,4)}, v{vXr}", f"ds_read_b128 {v(SEL+12,4)}, v{vXr} offset:1024"]
        for r in range(4):
            t = TM + 2*(r & 1)
            fill += [f"v_and_b32 v{t}, 0xffff0000, v{XF+4*ks+r}", f"v_lshlrev_b32 v{t+1}, 16, v{XF+4*ks+r}", f"v_fmac_f32 v{SQ+(r&1)*2}, v{t}, v{t}", f"v_fmac_f32 v{SQ+(r&1)*2+1}, v{t+1}, v{t+1}"]
        wk, wv = v(WF+8*s_,4), v(WF+8*s_+4,4); aK, aV = v(ACC,16), v(ACC+16,16)
        mf = [f"{MF32} {aK}, {wk}, {xf}, {'0' if z else aK}", f"{MF32} {aV}, {xf}, {wv}, {'0' if z else aV}", f"{MF16} {v(SX,4)}, {v(SEL,4)}, {xf}, {'0' if z else v(SX,4)}"]
        for i, m in enumerate(mf):
            k.e(m)
            for o in rd[2*i:2*i+2] + fill[6*i:6*i+6]: k.e(o)
    stamp(k, 2)
    k.e(f"v_add_f32 v{SQ}, v{SQ}, v{SQ+1}\nv_add_f32 v{SQ+2}, v{SQ+2}, v{SQ+3}\nv_add_f32 v{vSS}, v{SQ}, v{SQ+2}")
    halfop(k, vSS, vT)
    lin(k, sT0, [(sU, 128)], AEX)
    k.e(f"v_mov_b32 v{vS}, v{SX}\nv_and_b32 v{vT2}, 31, v{vL}\nv_cmp_eq_u32 s[62:63], 28, v{vT2}\nv_cmp_lt_u32 s[64:65], 27, v{vT2}\nv_lshl_add_u32 v{vT2}, v{vT2}, 2, s{sT0}")
    k.e("s_waitcnt lgkmcnt(0)")
    for b in (CS, CS+4): k.e(f"v_add_f32 v{b}, v{b}, v{b+1}\nv_add_f32 v{b+2}, v{b+2}, v{b+3}\nv_add_f32 v{b}, v{b}, v{b+2}")
    ln_fin(k, vS, vSS)
    k.e(f"""v_rsq_f32 v{vSS}, v{vSS}
    v_mul_f32 v{vS}, 0.5, v{vS}
    v_lshrrev_b32 v{vWr}, 5, v{vL}
    ds_write_b32 v{vT2}, v{vSS}
    v_mfma_f32_32x32x2_f32 {v(ACC,16)}, v{CS}, v{vS}, {v(ACC,16)}
    v_mfma_f32_32x32x2_f32 {v(ACC+16,16)}, v{vS}, v{CS+4}, {v(ACC+16,16)}
    v_lshl_add_u32 v{vWr}, v{vWr}, 4, s{sT0}
    v_cmp_lt_u32 vcc, 31, v{vL}
    v_mov_b32 v{vT}, 0x3f80
    v_cndmask_b32 v{vXr}, 0, v{vONE}, s[62:63]
    s_waitcnt lgkmcnt(0)""")
    for g_ in range(4): k.e(f"ds_read_b128 {v(WF+4*g_,4)}, v{vWr} offset:{32*g_}")
    lin(k, sT1, [(HD(), 64*4096), (TB(), 4*4096), (sU, 4096)], KVF)
    k.e("s_nop 1")
    for h in range(2):
        for r in range(8*h, 8*h+8): k.e(f"v_mul_f32 v{ACC+r}, v{ACC+r}, v{vSS}")
        for r in range(4*h, 4*h+4): k.e(f"v_cvt_pk_bf16_f32 v{PK+r}, v{ACC+2*r}, v{ACC+2*r+1}")
        if h: k.e(f"v_cndmask_b32 v{PK+6}, v{PK+6}, v{vONE}, vcc\nv_cndmask_b32 v{PK+7}, v{PK+7}, v{vT}, vcc")
        k.e(f"buffer_store_dwordx4 {v(PK+4*h,4)}, v{vA}, {WS}, s{sT1} offen offset:{1024*h} sc1")
    k.e("s_waitcnt lgkmcnt(0)")
    b = ACC+16
    for h in range(2):
        for r in range(8*h, 8*h+8): k.e(f"v_mul_f32 v{b+r}, v{b+r}, v{WF+r}")
        for r in range(4*h, 4*h+4): k.e(f"v_cvt_pk_bf16_f32 v{PK+8+r}, v{b+2*r}, v{b+2*r+1}")
        for r in range(4*h, 4*h+4): k.e(f"v_cndmask_b32 v{PK+8+r}, v{PK+8+r}, v{vXr}, s[64:65]")
        k.e(f"buffer_store_dwordx4 {v(PK+8+4*h,4)}, v{vA}, {WS}, s{sT1} offen offset:{2048+1024*h} sc1")
    if O.mwarm:
        k.e(f"v_lshlrev_b32 v{vT2}, 7, v{vL}\ns_lshr_b32 s{sT0}, s{sU}, 1\ns_lshr_b32 s{sT2}, s2, 3\ns_mov_b64 exec, 0x1ffffff")
        srd(k, sW, 2, 448*896); lin(k, sT1, [(sT2, 100*128), (sU, 25*128)])
        k.e(f"buffer_load_dword v255, v{vT2}, s[{sW}:{sW+3}], s{sT1} offen\ns_bitcmp1_b32 s{sU}, 0\ns_cselect_b32 s{sW}, s{PTR+10}, s{PTR+8}\ns_cselect_b32 s{sW+1}, s{PTR+11}, s{PTR+9}\ns_mov_b32 s{sW+2}, {448*3584}")
        lin(k, sT1, [(2, 50*128), (sT0, 25*128)])
        k.e(f"buffer_load_dword v255, v{vT2}, s[{sW}:{sW+3}], s{sT1} offen\ns_mov_b64 exec, 0x1fff")
        srd(k, sW, 6, 1792*896); lin(k, sT1, [(2, 52*128), (sU, 13*128)])
        k.e(f"buffer_load_dword v255, v{vT2}, s[{sW}:{sW+3}], s{sT1} offen\ns_mov_b64 exec, -1")
    k.e(f"v_mov_b32 v{vT}, {AEX+512}\ns_barrier\nds_read_b32 v{vT2}, v{vT}")
    def qrd(ks): return [f"ds_read_b64_tr_b16 {v(WF+4*(ks&7)+2*j,2)}, v{vWq} offset:{ks*1024 + j*256}" for j in range(2)]
    for ks in range(6):
        for o in qrd(ks): k.e(o)
    lin(k, sT1, [(HD(), 256), (TB(), 4), (sU, 64)], FA)
    k.e(f"s_waitcnt lgkmcnt(12)\nv_readfirstlane_b32 s{sSLOW}, v{vT2}")
    aQ = v(ACC+32,16); zero = B_zero()
    for ks in range(28):
        if ks == O.asig:
            signal(k, sT1, O.xmap, True, 3 if O.mwarm else 0); stamp(k, 3)
        k.e(f"s_waitcnt lgkmcnt({min(10, 2*(27-ks))})\n{MF32} {aQ}, {v(WF+4*(ks&7),4)}, {v(XF+4*ks,4)}, {'0' if ks == 0 else aQ}")
        if ks + 6 < 28:
            for o in qrd(ks+6): k.e(o)
        if ks >= 12:
            for o in zero[:-18][4*(ks-12):4*(ks-12)+4]: k.e(o)
        if ks == 22: k.e(f"v_add_u32 v{vWr}, {ACQ}, v{vA}\ns_barrier\nds_read_b128 {v(CS+8,4)}, v{vWr}")
    k.e(f"v_mul_f32 v{vSS}, {hex(f2u(28**-0.5*math.log2(math.e)))}, v{vSS}\ns_lshl_b32 s{sT0}, s{sU}, 11\ns_add_u32 s{sT0}, s{sT0}, {AQ}\nv_add_u32 v{vT2}, s{sT0}, v{vA}\nv_cmp_lt_u32 vcc, 31, v{vL}")
    b = CS+8
    k.e(f"v_add_f32 v{b}, v{b}, v{b+1}\nv_add_f32 v{b+2}, v{b+2}, v{b+3}\nv_add_f32 v{b}, v{b}, v{b+2}\ns_nop 1\nv_mfma_f32_32x32x2_f32 {aQ}, v{b}, v{vS}, {aQ}")
    for o in zero[-18:]: k.e(o)
    PK = WF
    b = ACC+32
    for r in range(16): k.e(f"v_mul_f32 v{b+r}, v{b+r}, v{vSS}")
    for r in range(8): k.e(f"v_cvt_pk_bf16_f32 v{PK+r}, v{b+2*r}, v{b+2*r+1}")
    k.e(f"v_cndmask_b32 v{PK+6}, v{PK+6}, 0, vcc\nv_cndmask_b32 v{PK+7}, v{PK+7}, 0, vcc\nds_write_b128 v{vT2}, {v(PK,4)}\nds_write_b128 v{vT2}, {v(PK+4,4)} offset:1024")
    k.e("s_waitcnt lgkmcnt(0)\ns_barrier")
    for i in range(4):
        k.e(f"v_xor_b32 v{vT}, {(3-i)*2048}, v{vT2}\nds_read_b128 {v(Q+8*i,4)}, v{vT}\nds_read_b128 {v(Q+8*i+4,4)}, v{vT} offset:1024")

def A_help(k):
    vXa, vWa, vP = 40, 42, 43
    sXO, sWO, sXM, sWM = 62, 63, 64, 65
    k.e(f"""v_lshrrev_b32 v{vT}, 2, v{vL}
    v_mul_u32_u24 v{vWa}, 2688, v{vT}
    v_and_b32 v{vT}, 3, v{vL}
    v_lshl_add_u32 v{vWa}, v{vT}, 4, v{vWa}
    v_lshrrev_b32 v{vT}, 3, v{vL}
    v_mul_u32_u24 v{vXa}, 896, v{vT}
    v_lshrrev_b32 v{vT}, 4, v{vL}
    v_and_b32 v{vT2}, 7, v{vL}
    v_xor_b32 v{vT}, v{vT}, v{vT2}
    v_xor_b32 v{vT2}, 4, v{vT}
    v_lshl_add_u32 v{vXa+1}, v{vT2}, 4, v{vXa}
    v_lshl_add_u32 v{vXa}, v{vT}, 4, v{vXa}""")
    lin(k, sXO, [(TB(), 128*896), (sU, 32*896)]); lin(k, sWO, [(HD(), 56), (sU, 16*2688)])
    lin(k, sXM, [(sU, 4096)]); lin(k, sWM, [(sU, 1024)])
    ptrs(k)
    ops = []
    def issue(c):
        sl = (c % ANS)*ASLOT
        for t in range(2): dma(k, vWa, sW, sWM, sl + AXB + t*4096, sWO, c*64*2688 + (t+1)*896)
        for i in range(4): dma(k, vXa + (i & 1), sX, sXM, sl + i*1024, sXO, c*128 + i*8*896)
        ops.extend([c]*6)
    def pf():
        k.e(f"s_lshr_b32 s{sT2}, s2, 3\ns_lshl_b32 s{sT2}, s{sT2}, 2\ns_add_u32 s{sT2}, s{sT2}, s{sU}")
        if not O.xmap:
            k.e(f"v_mul_u32_u24 v{vT}, 9363, v{vL}\nv_lshrrev_b32 v{vT}, 16, v{vT}\nv_mul_u32_u24 v{vT}, {64*2688 - 7*128}, v{vT}\nv_lshl_add_u32 v{vP}, v{vL}, 7, v{vT}")
            k.e(f"s_lshr_b32 s{sT0}, s{sT2}, 1\ns_and_b32 s{sT2}, s{sT2}, 1"); lin(k, sT1, [(sT0, 2688), (sT2, 896)], 896 + O.apf*64*2688)
            k.e(f"buffer_load_dword v255, v{vP}, s[{sW}:{sW+3}], s{sT1} offen")
            lin(k, sT1, [(sG, 128*896), (sJ, 8*896), (sU, 2*896)])
            k.e(f"v_lshlrev_b32 v{vT}, 7, v{vL}\ns_mov_b64 exec, 0x3fff\nbuffer_load_dword v255, v{vT}, s[{sX}:{sX+3}], s{sT1} offen\ns_mov_b64 exec, -1")
            lin(k, sT1, [(sT0, 2688), (sT2, 4*64*2688)])
            k.e(f"s_mov_b64 exec, 0xfffffff\nbuffer_load_dword v255, v{vP}, s[{sW}:{sW+3}], s{sT1} offen\ns_mov_b64 exec, -1")
            ops.extend([-1]*3)
        else:
            k.e(f"v_and_b32 v{vT}, 15, v{vL}\nv_mul_u32_u24 v{vP}, 896, v{vT}\nv_lshrrev_b32 v{vT}, 4, v{vL}\nv_lshl_add_u32 v{vP}, v{vT}, 7, v{vP}")
            lin(k, sT1, [(sT2, 16*896)], 3*128)
            k.e(f"buffer_load_dword v255, v{vP}, s[{sX}:{sX+3}], s{sT1} offen")
            ops.append(-1)
    vCr, vCq, SEL, CSA, CF = 44, 45, 48, 52, 72
    def hsetup():
        H_setup(k)
        tr_addr(k, vCr, vT, 64, 32, 8)
        k.e(f"v_add_u32 v{vCr}, s{sWM}, v{vCr}\nv_add_u32 v{vCq}, {AWQ}, v{vCr}\nv_mov_b32 v{vT2}, 0x3f803f80\nv_lshrrev_b32 v{vT}, 2, v{vL}\nv_xor_b32 v{vT}, v{vT}, v{vL}\nv_and_b32 v{vT}, 4, v{vT}\nv_cmp_eq_u32 vcc, 0, v{vT}\ns_nop 1")
        for r in range(4): k.e(f"v_cndmask_b32 v{SEL+r}, 0, v{vT2}, vcc")
    nis = 0
    for c in range(O.anp):
        if O.apf is not None and c == O.apos: pf()
        if c == O.hset: hsetup()
        issue(c); nis += 1
    if O.apf is not None and O.anp == O.apos: pf()
    if O.hset >= O.anp: hsetup()
    nonce(k)
    nq = 0
    for c in range(7):
        last = max(i for i, o in enumerate(ops) if o == c)
        k.e(f"s_waitcnt vmcnt({len(ops)-1-last})\ns_barrier")
        for t in range(2):
            for j in range(2): k.e(f"ds_read_b64_tr_b16 {v(CF+4*t+2*j,2)}, v{vCr} offset:{AXB + t*4096 + j*256}")
        def csm():
            k.e("s_waitcnt lgkmcnt(0)")
            for t in range(2): k.e(f"{MF16} {v(CSA+4*t,4)}, {v(SEL,4)}, {v(CF+4*t,4)}, {'0' if c == 0 else v(CSA+4*t,4)}")
        if c == 2:
            lin(k, sT1, [(sG, 128)], HELLO); ops.append(-1)
            k.e(f"s_mov_b64 exec, 0xffff\nbuffer_load_dword v19, v17, {WS}, s{sT1} offen sc1\ns_mov_b64 exec, -1")
        if nis < 7: issue(nis); nis += 1
        else:
            for i in range(nq, min(7, nq+4) if c < 6 else 7): dma(k, vWa, sW, sWM, AWQ + i*4096, sWO, i*64*2688); ops.append(-1); nq = i+1
        if c == 6:
            csm(); lin(k, sT1, [(sU, 4)], ACS)
            k.e(f"v_add_u32 v{vT}, s{sT1}, v{vA}\ns_nop 4\nds_write_b32 v{vT}, v{CSA}\nds_write_b32 v{vT}, v{CSA+4} offset:1024\ns_waitcnt lgkmcnt(0)\ns_barrier")
        if c < 6: csm(); k.e(f"v_add_u32 v{vCr}, {(((c+1) % ANS - c % ANS)*ASLOT) & 0xffffffff}, v{vCr}")
    Lg = k.label("hok")
    k.e(f"s_getreg_b32 s{sT1}, hwreg(HW_REG_XCC_ID, 0, 4)\ns_xor_b32 s{sT1}, s{sT1}, s{sNON}\ns_mov_b64 exec, 0xffff\nv_cmp_ne_u32 vcc, s{sT1}, v19\ns_mov_b64 exec, -1")
    if not O.force_slow: k.e(f"s_cbranch_vccz {Lg}")
    hello_check(k)
    k.e(f"{Lg}:\nv_mov_b32 v{vT}, {AEX+512}\nv_mov_b32 v{vT2}, s{sSLOW}\nds_write_b32 v{vT}, v{vT2}\ns_waitcnt vmcnt(0) lgkmcnt(0)\ns_barrier")
    for i in range(7):
        for j in range(2): k.e(f"ds_read_b64_tr_b16 {v(CF+4*i+2*j,2)}, v{vCq} offset:{i*4096 + j*256}")
    lin(k, sT1, [(sU, 4)], ACQ); k.e(f"v_add_u32 v{vT}, s{sT1}, v{vA}\ns_waitcnt lgkmcnt(0)")
    for i in range(7): k.e(f"{MF16} {v(CSA,4)}, {v(SEL,4)}, {v(CF+4*i,4)}, {'0' if i == 0 else v(CSA,4)}")
    k.e(f"s_nop 7\nds_write_b32 v{vT}, v{CSA}\ns_waitcnt lgkmcnt(0)\ns_barrier")

def lcheck(k, R, Lok, Lfb, sPASS):
    for b in (R, R+4): k.e(f"v_add_f32 v{b}, v{b}, v{b+1}\nv_add_f32 v{b+2}, v{b+2}, v{b+3}\nv_add_f32 v{b}, v{b}, v{b+2}")
    k.e(f"""v_mov_b32 v{R+1}, {hex(f2u(2.0**-64))}
    v_mov_b32 v{R+2}, {hex(f2u(2.0**64))}
    v_cmp_nle_f32 vcc, v{R+1}, v{R}
    v_cmp_nle_f32 s[62:63], v{R+1}, v{R+4}
    v_cmp_nge_f32 s[64:65], v{R+2}, v{R}
    v_cmp_nge_f32 s[66:67], v{R+2}, v{R+4}
    s_nop 0
    s_or_b64 vcc, vcc, s[62:63]
    s_or_b64 s[64:65], s[64:65], s[66:67]
    s_or_b64 vcc, vcc, s[64:65]
    s_cbranch_scc0 {Lok}
    s_cmp_eq_u32 s{sPASS}, 0
    s_cbranch_scc1 {Lfb}
    {Lok}:""")

def B_main(k):
    sKV, sIT, sPASS = 36, 37, 38
    vRW, vLW, vLR = 5, 6, 7
    k.e(f"s_mov_b32 s{sPASS}, 0")
    def kvbase(): lin(k, sKV, [(HD(), 64*4096), (sU, 16*4096)], KVF)
    def ld(slot):
        return [f"buffer_load_dwordx4 {v(KVS[slot]+4*i,4)}, v{vA}, {WS}, s{sKV} offen offset:{1024*i} {O.ldKV}" for i in range(4)] + [f"s_add_u32 s{sKV}, s{sKV}, 4096"]
    Lmain = k.label("Bmain"); k.e(Lmain + ":")
    lin(k, sT0, [(sU, 16384)], RD)
    k.e(f"v_add_u32 v{vRW}, s{sT0}, v{vA}\nv_add_u32 v{vLR}, {LA}, v{vA}\nv_and_b32 v{vLW}, 31, v{vL}")
    lin(k, sT0, [(sU, 512+4)])
    k.e(f"v_lshl_add_u32 v{vLW}, v{vLW}, 4, s{sT0}")
    def qk(n):
        kf = KVS[(n>>2) & 1]; sb = S + 16*(n & 1); q = Q + 8*(n & 3)
        return [f"{MF32} {v(sb,16)}, {v(kf,4)}, {v(q,4)}, 0", f"{MF32} {v(sb,16)}, {v(kf+4,4)}, {v(q+4,4)}, {v(sb,16)}"]
    def pv(n):
        vf = KVS[(n>>2) & 1] + 8; p = P + 8*(n & 1); o = OA + 16*(n & 3)
        return [f"{MF32} {v(o,16)}, {v(vf,4)}, {v(p,4)}, {v(o,16)}", f"{MF32} {v(o,16)}, {v(vf+4,4)}, {v(p+4,4)}, {v(o,16)}"]
    def rdw(i): return [f"ds_write_b128 v{vRW}, {v(OA+16*i+4*h,4)} offset:{i*4096 + h*1024}" for h in range(4)]
    def kvr(t): return [f"ds_read_b128 {v(KVS[t&1]+4*i,4)}, v{vRW} offset:{(t&3)*4096 + i*1024}" for i in range(4)]
    def step(n, last):
        sb = S + 16*(n & 1); p = P + 8*(n & 1); ops = []
        for i in range(16):
            ops.append(f"v_exp_f32 v{sb+i}, v{sb+i}")
            if i >= 2 and i % 2 == 0: ops.append(f"v_cvt_pk_bf16_f32 v{p+i//2-1}, v{sb+i-2}, v{sb+i-1}")
        mf = qk(n+1) + pv(n-1); extra = [[], [], [], []]
        if last and n == 15: mf = [None, None] + pv(n-1)
        if not (last and n >= 12):
            if n & 3 == 1: extra[3] = ["s_barrier"]
            if n & 3 == 2: extra = [[o] for o in kvr((n>>2) + 1)]; extra[3].append("s_waitcnt lgkmcnt(2)")
            if n & 3 == 3: extra[1] = ["s_waitcnt lgkmcnt(0)"]
        if not last and n == 15: extra[2] = [f"s_sub_u32 s{sIT}, s{sIT}, 1"]; extra[3] = [f"s_cmp_lg_u32 s{sIT}, 0"]
        if last and n >= 14: w = rdw(n-14); extra = [[], w[:1], w[1:2], w[2:]] if n == 14 else [[], [], w[:2], w[2:]]
        cuts = [0, 6, 12, 18, 23]
        for g_ in range(4):
            for o in ops[cuts[g_]:cuts[g_+1]]: k.e(o)
            if mf[g_]: k.e(mf[g_])
            for o in extra[g_]: k.e(o)
        k.e(f"v_cvt_pk_bf16_f32 v{p+7}, v{sb+14}, v{sb+15}")
    stamp(k, 4)
    k.e("s_waitcnt lgkmcnt(0)")
    stamp(k, 5)
    for o in qk(0): k.e(o)
    k.e(f"s_mov_b32 s{sIT}, 3\ns_waitcnt lgkmcnt(0)\ns_nop 7\ns_nop 2")
    Ll = k.label("Bloop"); k.e(".p2align 6\n" + Ll + ":")
    for n in range(16): step(n, False)
    k.e(f"s_cbranch_scc1 {Ll}")
    for n in range(16): step(n, True)
    k.e("s_nop 1")
    for o in pv(15): k.e(o)
    stamp(k, 6)
    for i in range(4): k.e(f"v_xor_b32 v{S+i}, {(3-i)*512}, v{vLW}\nv_add_u32 v{S+i}, {LA}, v{S+i}")
    for o in rdw(2): k.e(o)
    k.e("s_mov_b32 exec_lo, 0")
    for i in range(4): k.e(f"ds_write_b32 v{S+i}, v{OA+16*i+12}")
    k.e("s_mov_b64 exec, -1")
    for i in range(3):
        k.e(f"s_xor_b32 s{sT0}, s{sU}, {3-i}"); lin(k, sT0, [(sT0, 16384)], RD + i*4096); k.e(f"v_add_u32 v{S+4+i}, s{sT0}, v{vA}")
    k.e(f"s_waitcnt lgkmcnt(0)\ns_barrier\nds_read_b128 {v(P,4)}, v{vLR}\nds_read_b128 {v(P+4,4)}, v{vLR} offset:1024")
    for i in range(3):
        for h in range(4): k.e(f"ds_read_b128 {v(KV+16*i+4*h,4)}, v{S+4+i} offset:{h*1024}")
    Lfb, Lok = k.label("Bfb"), k.label("Bok")
    k.e("s_waitcnt lgkmcnt(12)")
    lcheck(k, P, Lok, Lfb, sPASS)
    lin(k, sT1, [(TB(), 4*32768), (sU, 32768), (HD(), 2048)], OF)
    b = OA+48
    k.e("s_waitcnt lgkmcnt(8)")
    for r in range(16): k.e(f"v_add_f32 v{b+r}, v{b+r}, v{KV+r}")
    k.e("s_waitcnt lgkmcnt(0)\ns_barrier")
    for r in [12] + [x for x in range(16) if x != 12]:
        k.e(f"v_add_f32 v{KV+16+r}, v{KV+16+r}, v{KV+32+r}\nv_add_f32 v{b+r}, v{b+r}, v{KV+16+r}")
        if r == 12: k.e(f"v_mov_b32 v{vT}, v{b+12}\nv_mov_b32 v{vT2}, v{b+12}")
        if r == 1: k.e(f"v_permlane32_swap_b32 v{vT}, v{vT2}")
        if r == 3: k.e(f"v_rcp_f32 v{vT2}, v{vT2}\nv_cmp_lt_u32 vcc, 31, v{vL}")
    for h in range(2):
        for r in range(8*h, 8*h+8): k.e(f"v_mul_f32 v{b+r}, v{b+r}, v{vT2}")
        for r in range(4*h, 4*h+4): k.e(f"v_cvt_pk_bf16_f32 v{P+r}, v{b+2*r}, v{b+2*r+1}")
        if h: k.e(f"v_cndmask_b32 v{P+6}, v{P+6}, 0, vcc\nv_cndmask_b32 v{P+7}, v{P+7}, 0, vcc")
        k.e(f"buffer_store_dwordx4 {v(P+4*h,4)}, v{vA}, {WS}, s{sT1} offen offset:{1024*h} {'sc1' if O.xmap else O.stO}")
    lin(k, sT1, [(TB(), 4*128), (sU, 128), (HD(), 4)], FB)
    signal(k, sT1, not O.xmap, O.stO == "sc1")
    stamp(k, 7)
    def fallback():
        M = KV + 16
        k.e(f"{Lfb}:\ns_waitcnt lgkmcnt(0)\ns_barrier\ns_mov_b32 s{sPASS}, 1\ns_mov_b32 s{sIT}, 16")
        kvbase()
        for j in range(4): k.e(f"v_mov_b32 v{M+j}, 0xff800000")
        Lf = k.label("Bfl"); k.e(Lf + ":")
        for o in ld(0)[:2]: k.e(o)
        k.e(f"s_add_u32 s{sKV}, s{sKV}, 4096\ns_waitcnt vmcnt(0)")
        for j in range(4):
            for o in qk(j): k.e(o)
            k.e("s_nop 7\ns_nop 7")
            for r in range(0, 16, 2): k.e(f"v_max3_f32 v{M+j}, v{M+j}, v{S+16*(j&1)+r}, v{S+16*(j&1)+r+1}")
        k.e(f"s_sub_u32 s{sIT}, s{sIT}, 1\ns_cmp_lg_u32 s{sIT}, 0\ns_cbranch_scc1 {Lf}")
        for j in range(4):
            halfop(k, M+j, M+4, "v_max_f32")
            k.e(f"v_xor_b32 v{S+j}, {(3-j)*512}, v{vLW}\nv_add_u32 v{S+j}, {LA}, v{S+j}\nds_write_b32 v{S+j}, v{M+j}\nv_and_b32 v{S+j}, -16, v{S+j}")
        k.e("s_waitcnt lgkmcnt(0)\ns_barrier")
        for j in range(4): k.e(f"ds_read_b128 {v(S+16+4*j,4)}, v{S+j}")
        k.e(f"v_cmp_lt_u32 vcc, 31, v{vL}\ns_waitcnt lgkmcnt(0)\ns_barrier")
        for j in range(4):
            b = S+16+4*j; h, m_, l_ = S+8, S+9, S+10
            k.e(f"""v_max3_f32 v{b}, v{b}, v{b+1}, v{b+2}
            v_max_f32 v{b}, v{b}, v{b+3}
            v_sub_f32 v{b}, 0, v{b}
            v_and_b32 v{h}, 0xffff0000, v{b}
            v_sub_f32 v{b}, v{b}, v{h}
            v_and_b32 v{m_}, 0xffff0000, v{b}
            v_sub_f32 v{b}, v{b}, v{m_}
            v_lshrrev_b32 v{l_}, 16, v{b}
            v_lshrrev_b32 v{h}, 16, v{h}
            v_or_b32 v{h}, v{h}, v{m_}
            v_cndmask_b32 v{Q+8*j+6}, v{Q+8*j+6}, v{h}, vcc
            v_cndmask_b32 v{Q+8*j+7}, v{Q+8*j+7}, v{l_}, vcc""")
        k.e("s_barrier")
        for o in kvr(0): k.e(o)
        for o in B_zero(): k.e(o)
        k.e(f"s_branch {Lmain}")
    return fallback

def dw_setup(k, vWa, sWO, sWM, t3=5):
    k.e(f"""s_bitcmp1_b32 s{sU}, 0
    s_cselect_b32 s{sW2}, s{PTR+10}, s{PTR+8}
    s_cselect_b32 s{sW2+1}, s{PTR+11}, s{PTR+9}
    s_cselect_b32 s{sWM}, {DUP}, 0
    s_mov_b32 s{sW2+2}, {448*3584}
    s_mov_b32 s{sW2+3}, 0x20000
    s_lshr_b32 s{sT0}, s{sU}, 1
    s_mul_i32 s{sT1}, s{sT0}, 7168
    s_add_u32 s{sWM}, s{sWM}, s{sT1}""")
    lin(k, sWO, [(sT0, 32*3584), (sJ, 224)])
    k.e(f"s_and_b32 s{sT0}, s{sJ}, 1\ns_lshl_b32 s{sT1}, s{sT0}, 5\ns_mul_i32 s{sT0}, s{sT0}, 192\ns_sub_u32 s{sT0}, 192, s{sT0}")
    for i in range(7):
        a_ = vWa+i
        k.e(f"""v_add_u32 v{vT}, {64*i}, v{vL}
        v_mul_u32_u24 v{a_}, 1171, v{vT}
        v_lshrrev_b32 v{a_}, 16, v{a_}
        v_mul_u32_u24 v{vT2}, 56, v{a_}
        v_sub_u32 v{vT}, v{vT}, v{vT2}
        v_mul_u32_u24 v{a_}, {4*3584}, v{a_}
        v_cmp_gt_u32 vcc, 48, v{vT}
        v_mul_u32_u24 v{vT2}, 5462, v{vT}
        v_lshrrev_b32 v{vT2}, 16, v{vT2}
        v_mul_u32_u24 v{vT2}, {3584-192}, v{vT2}
        v_lshl_add_u32 v{vT2}, v{vT}, 4, v{vT2}
        v_add_u32 v{vT2}, s{sT1}, v{vT2}
        v_bfe_u32 v{t3}, v{vT}, 1, 2
        v_mul_u32_u24 v{t3}, 3584, v{t3}
        v_and_b32 v{vT}, 1, v{vT}
        v_lshl_add_u32 v{t3}, v{vT}, 4, v{t3}
        v_add_u32 v{t3}, s{sT0}, v{t3}
        v_cndmask_b32 v{vT}, v{t3}, v{vT2}, vcc
        v_add_u32 v{a_}, v{a_}, v{vT}""")
def dw_issue(k, c, vWa, sWO, sWM, idx=range(7)):
    for i in idx: dma(k, vWa+i, sW2, sWM, (c % 5)*DSLOT + i*1024, sWO, c*64*3584)

def dr_addr(k, vWr, vWh):
    k.e(f"""v_lshrrev_b32 v{vT}, 5, v{vL}
    v_mul_u32_u24 v{vWr}, 896, v{vT}
    v_bfe_u32 v{vT}, v{vL}, 4, 1
    v_mul_u32_u24 v{vT}, {DUP}, v{vT}
    v_add_u32 v{vWr}, v{vWr}, v{vT}
    v_and_b32 v{vT}, 3, v{vL}
    v_lshl_add_u32 v{vWr}, v{vT}, 3, v{vWr}
    v_bfe_u32 v{vT}, v{vL}, 2, 2
    v_lshl_add_u32 v{vWh}, v{vT}, 5, v{vWr}
    v_mul_u32_u24 v{vT}, 192, v{vT}
    v_add_u32 v{vWr}, v{vWr}, v{vT}""")

CA, SEL, vCr, vCh, CF = 20, 48, 52, 53, 128
def cs_setup(k, sl):
    dr_addr(k, vCr, vCh); lin(k, sT0, [(sU, 4*896)], sl*DSLOT); lin(k, sT1, [(sU, 4096)], CSH)
    k.e(f"v_add_u32 v{vCr}, s{sT0}, v{vCr}\nv_add_u32 v{vCh}, s{sT0}, v{vCh}\nv_lshl_add_u32 v{vCh+1}, v{vL}, 2, s{sT1}\nv_mov_b32 v{vT2}, 0x3f803f80\nv_lshrrev_b32 v{vT}, 2, v{vL}\nv_xor_b32 v{vT}, v{vT}, v{vL}\nv_and_b32 v{vT}, 4, v{vT}\nv_cmp_eq_u32 vcc, 0, v{vT}\ns_nop 1")
    for r in range(4): k.e(f"v_cndmask_b32 v{SEL+r}, 0, v{vT2}, vcc")
def cs_chunk(k, c, prio, p0=2):
    k.e(f"s_setprio {p0}")
    if c in (3, 5): d = (3*DSLOT*(4-c)) & 0xffffffff; k.e(f"v_add_u32 v{vCr}, {d}, v{vCr}\nv_add_u32 v{vCh}, {d}, v{vCh}")
    for t in range(7):
        for j in range(2): k.e(f"ds_read_b64_tr_b16 {v(CF+4*t+2*j,2)}, v{vCr if t < 6 else vCh} offset:{(c % 5 % 3)*DSLOT + 2*j*896 + (32*t if t < 6 else 768)}")
    k.e("s_waitcnt lgkmcnt(0)")
    for t in range(7): k.e(f"{MF16} {v(CA+4*t,4)}, {v(SEL,4)}, {v(CF+4*t,4)}, {'0' if c == 0 else v(CA+4*t,4)}")
    k.e(f"s_setprio {prio}")

def D_main(k):
    ACC, WF, XF, NXR = 8, 120, 148, 27
    ST_, CT = XF + 4*22, XF + 4*2
    vWr, vWh, vS, vSS = 5, 0, 6, 7
    sWO, sWM, sXO, sM6 = 36, 37, 38, 39
    XA = 240
    dw_setup(k, XA, sWO, sWM)
    for c in (2, 3): dw_issue(k, c, XA, sWO, sWM)
    cs_setup(k, 0)
    for c in range(2): cs_chunk(k, c, 1)
    k.e("s_waitcnt vmcnt(0)\ns_barrier")
    for c in (2, 3): cs_chunk(k, c, 1, O.csp)
    dr_addr(k, vWr, vWh)
    def wrd(dst, s_, j, t): return f"ds_read_b64_tr_b16 {v(dst+2*j,2)}, v{vWr if t < 6 else vWh} offset:{(4*s_+2*j)*896 + (32*t if t < 6 else 768)}"
    for t in range(7): k.e(f"ds_write_b32 v{vCh+1}, v{CA+4*t} offset:{256*t}")
    k.e("s_waitcnt lgkmcnt(0)\ns_barrier")
    if '(dw,4)' not in O.dplan: dw_issue(k, 4, XA, sWO, sWM)
    k.e(f"v_lshlrev_b32 v{vT2}, 2, v{vL}")
    lin(k, sT1, [(sG, 4*128), (sU, 128)], FC); lin(k, sXO, [(sG, 4*28*1024), (sU, 28*1024)], HF); lin(k, sT2, [(sG, 4*4096), (sU, 4096)], STP)
    def reads(ks, t): return [wrd(WF+4*t, ks & 3, j, t) for j in range(2)]
    for t in range(7):
        for o in reads(0, t): k.e(o)
    stamp(k, 8)
    poll(k, vT2, sT1, 16)
    stamp(k, 9)
    vm = []
    def xld(ks):
        vm.append(ks)
        o = [f"buffer_load_dwordx4 {v(XF+4*(ks%NXR),4)}, v{vA}, {WS}, s{sXO} offen offset:{1024*(ks&3)} sc1"]
        return o + ([f"s_add_u32 s{sXO}, s{sXO}, 4096"] if ks & 3 == 3 else [])
    def vwait(x): return len(vm) - 1 - max(i for i, o in enumerate(vm) if o == x)
    nx = O.dx0
    for ks in range(nx):
        for o in xld(ks): k.e(o)
    k.e(f"v_add_u32 v{vT2}, {STG}, v{vA}")
    LB = [XF+4*6, XF+4*11, XF+4*16]
    def lastreads(t): return [wrd(LB[t%3]+4*s_, s_, j, t) for s_ in range(4) for j in range(2)] + [f"ds_read_b128 {v(LB[t%3]+16,4)}, v{vT2} offset:{1024*t}"]
    st = []
    for d in (8, 4, 2): st += [f"v_add_f32 v{ST_+r}, v{ST_+r}, v{ST_+d+r}" for r in range(0, d, 2)]
    st += [f"v_mov_b32 v{vS}, v{ST_}", f"v_permlane32_swap_b32 v{vS}, v{ST_}", f"v_add_f32 v{vS}, v{vS}, v{ST_}", f"v_mul_f32 v{vS}, {hex(f2u(-1.0/448))}, v{vS}"]
    st += [f"v_cvt_pk_bf16_f32 v{CT}, v{vS}, v{vS}", f"v_and_b32 v{vT}, 0xffff0000, v{CT}", f"v_sub_f32 v{vT}, v{vS}, v{vT}", f"v_cvt_pk_bf16_f32 v{CT+1}, v{vT}, 0", f"v_mov_b32 v{CT+2}, v{CT}", f"v_mov_b32 v{CT+3}, v{CT+1}"]
    KST, KS0, BT = 5, 8, 2
    lg = [("w", 0, t) for t in range(7) for j in range(2)]
    def lwait(x): return min(15, len(lg) - 1 - max(i for i, o in enumerate(lg) if o == x))
    for ks in range(24):
        bar = ks & 3 == 3
        for t in range(7):
            if t == 0: k.e(f"s_waitcnt vmcnt({vwait('st') if ks == KST else vwait(ks)}) lgkmcnt({lwait(('w', ks, 0))})")
            elif t & 1 and not (bar and t > BT): k.e(f"s_waitcnt lgkmcnt({lwait(('w', ks, t+1))})")
            if ks == 0 and t == 0: stamp(k, 10); stamp(k, 1, 'D')
            k.e(f"{MF32} {v(ACC+16*t,16)}, {v(WF+4*t,4)}, {v(XF+4*(ks%NXR),4)}, {'0' if ks == 0 else v(ACC+16*t,16)}")
            if bar and t == 0:
                d = ((((ks>>2)+1) % 5 - (ks>>2) % 5)*DSLOT) & 0xffffffff
                k.e(f"v_add_u32 v{vWr}, {d}, v{vWr}\nv_add_u32 v{vWh}, {d}, v{vWh}")
            if bar and t == BT:
                k.e("s_waitcnt lgkmcnt(0)"); stamp(k, 2 + 2*(ks>>2), "D"); k.e("s_barrier"); stamp(k, 3 + 2*(ks>>2), "D")
            todo = [t] if not bar else {2: [0, 1], 3: [2, 3]}.get(t, [t] if t > 3 else [])
            for tt in todo:
                if ks < 23:
                    for o in reads(ks+1, tt): k.e(o); lg.append(("w", ks+1, tt))
                else:
                    for o in lastreads(0)[2*tt:2*tt+2]: k.e(o)
            if t in (1, 3, 5) and nx < 28 and (nx < 22 or ks > KST):
                for o in xld(nx): k.e(o)
                nx += 1
            if ks < 2 and t in (2, 4):
                q = 2*ks + (t >> 2); vm.append("st")
                k.e(f"buffer_load_dwordx4 {v(ST_+4*q,4)}, v{vA}, {WS}, s{sT2} offen offset:{1024*q} sc1")
            if ks in (KST, KST+1):
                for o in st[4*(7*(ks-KST)+t):4*(7*(ks-KST)+t)+4]: k.e(o)
    assert nx == 28
    k.e(f"s_and_b32 s{sT0}, s{sJ}, 1")
    lin(k, sT2, [(sG, 4*112*1024), (sU, 112*1024), (sJ, 7*1024), (sT0, 1024)], MF)
    k.e(f"s_mul_i32 s{sT0}, s{sT0}, 7168\ns_sub_u32 s{sM6}, s{sT2}, s{sT0}\ns_add_u32 s{sM6}, s{sM6}, 4096")
    stamp(k, 11)
    def epi(t):
        b = ACC+16*t; o = []
        for r in range(8): o.append(f"v_max_f32 v{b+r}, 0, v{b+r}")
        for r in range(8): o.append(f"v_mul_f32 v{b+r}, v{b+r}, v{b+8+r}")
        for r in range(4): o.append(f"v_cvt_pk_bf16_f32 v{b+8+r}, v{b+2*r}, v{b+2*r+1}")
        return o
    def est(t):
        return ([f"s_add_u32 s{sT2}, s{sT2}, 4096"] if t == 4 else []) + [f"buffer_store_dwordx4 {v(ACC+16*t+8,4)}, v{vA}, {WS}, s{sT2 if t < 6 else sM6} offen offset:{1024*(t&3)} {O.stM if t < O.stMn else ''}"]
    for t in range(7):
        k.e("s_waitcnt vmcnt(0) lgkmcnt(0)" if t == 0 else "s_waitcnt lgkmcnt(0)")
        lr = lastreads(t+1) if t < 6 else []
        ep = epi(t-2) if t >= 2 else []
        for s_ in range(5):
            k.e(f"{MF32} {v(ACC+16*t,16)}, {v(LB[t%3]+4*s_,4)}, {v(XF+4*((24+s_)%NXR) if s_ < 4 else CT,4)}, {v(ACC+16*t,16)}")
            for o in lr[3*s_:3*s_+3]: k.e(o)
            if s_ == O.ests and t >= 3:
                for o in est(t-3): k.e(o)
            for o in ep[[0,3,6,9,14][s_]:[3,6,9,14,20][s_]]: k.e(o)
    stamp(k, 14, 'D')
    for o in est(4) + epi(5) + est(5) + epi(6) + est(6): k.e(o)
    k.e("s_barrier")
    lin(k, sT1, [(sG, 4*128), (sU, 128), (sJ, 4)], FD)
    signal(k, sT1, True, O.stM == "sc1" and O.stMn == 7)
    if O.wb:
        Lw = k.label("nowb"); k.e(f"s_cmp_lg_u32 s{sU}, 0\ns_cbranch_scc1 {Lw}\ns_cmp_lt_u32 s{sJ}, {O.wb}\ns_cbranch_scc1 {Lw}\nbuffer_wbl2 sc1\n{Lw}:")
    stamp(k, 12)

WOF = 72
EvD, EvR, EWA, EWB, sEO, sNB = 5, 6, 200, 72, 27, 3
def e_setup(k):
    k.e(f"s_lshr_b32 s{sNB}, s{sJ}, 1"); lin(k, sEO, [(sU, 448*896), (sNB, 128)])
    k.e(f"""v_lshrrev_b32 v{vT}, 3, v{vL}
    v_mul_u32_u24 v{EvD}, 896, v{vT}
    v_bfe_u32 v{vT}, v{vL}, 4, 1
    v_lshlrev_b32 v{vT}, 2, v{vT}
    v_and_b32 v{vT2}, 7, v{vL}
    v_xor_b32 v{vT}, v{vT}, v{vT2}
    v_lshl_add_u32 v{EvD}, v{vT}, 4, v{EvD}""")
    tr_addr(k, EvR, vT, 128, 32)
    k.e(f"v_lshrrev_b32 v{vT}, 3, v{vL}\nv_xor_b32 v{vT}, s{sU}, v{vT}\nv_and_b32 v{vT}, 1, v{vT}\nv_lshl_add_u32 v{EvR}, v{vT}, 6, v{EvR}\nv_xor_b32 v{EvR+1}, 64, v{EvR}")
def H_setup(k):
    sWO, sWM, sB, sPASS, sNQ, sTT, sKV, sKM = 36, 37, 38, 39, 60, 61, 6, 7
    vWa, vD, vR, vC, vX, XR = 8, 15, 16, 17, 18, 56
    dw_setup(k, vWa, sWO, sWM)
    k.e(f"s_and_b32 s{sNQ}, s{sJ}, 3\ns_lshr_b32 s{sTT}, s{sJ}, 2\ns_lshl_b32 s{sT0}, s{sG}, 2\ns_add_u32 s{sTT}, s{sTT}, s{sT0}")
    k.e(f"v_lshrrev_b32 v{vT}, 2, v{vL}\nv_mul_u32_u24 v{vD}, 896, v{vT}\nv_and_b32 v{vT}, 3, v{vL}\nv_lshl_add_u32 v{vD}, v{vT}, 4, v{vD}")
    k.e(f"s_mul_i32 s{sB}, s{sNQ}, 224\ns_and_b32 s{sB}, s{sB}, -64\ns_lshl_b32 s{sT0}, s{sU}, 6\ns_add_u32 s{sB}, s{sB}, s{sT0}")
    tr_addr(k, vR, vT, 64, 32)
    k.e(f"v_add_u32 v{vR}, s{sWM}, v{vR}\nv_lshlrev_b32 v{vC}, 2, v{vL}")
    k.e(f"v_and_b32 v{vT}, 31, v{vL}\nv_lshl_add_u32 v{vX}, v{vT}, 6, s{sWM}\nv_lshrrev_b32 v{vT}, 5, v{vL}\nv_lshl_add_u32 v{vX}, v{vT}, 3, v{vX}")
    e_setup(k)
    k.e(f"v_add_u32 v22, s{sWM}, v{EvR}\nv_add_u32 v23, s{sWM}, v{EvR+1}")
    lin(k, sKV, [(HD(), 64*4096), (sU, 4096)], KVF); lin(k, sKM, [(sU, 16384)], RD)

def B_help(k):
    sWO, sWM, sB, sPASS, sNQ, sTT, sKV, sKM = 36, 37, 38, 39, 60, 61, 6, 7
    vWa, vD, vR, vC, vX, XR = 8, 15, 16, 17, 18, 56
    srd(k, sW, 2, 448*896)
    vm = []
    def vw(x): return len(vm) - 1 - max(i for i, o in enumerate(vm) if o == x)
    def kv(t):
        k.e(f"s_add_u32 m0, s{sKM}, {(t&3)*4096}\ns_add_u32 s{sT0}, s{TB()}, {t}\ns_and_b32 s{sT0}, s{sT0}, 15\ns_lshl_b32 s{sT0}, s{sT0}, 14\ns_add_u32 s{sT0}, s{sT0}, s{sKV}")
        for i in range(4): k.e(f"buffer_load_dwordx4 v{vA}, {WS}, s{sT0} offen offset:{1024*i} {O.ldKV} lds"); vm.append(("kv", t))
    def dw_i(c): dw_issue(k, c, vWa, sWO, sWM); vm.extend([("dw", c)]*7)
    def wo_r(p, sl):
        k.e(f"s_waitcnt vmcnt({vw(('wo', p))})"); Lj = k.label("wj")
        for u in range(4):
            Ln = k.label("wn"); b = WOF + 32*((p - u) & 3)
            if u < 3: k.e(f"s_cmp_lg_u32 s{sU}, {u}\ns_cbranch_scc1 {Ln}")
            for hh in range(4):
                for s_ in range(2):
                    for j in range(2): k.e(f"ds_read_b64_tr_b16 {v(b+8*hh+4*s_+2*j,2)}, v{vR} offset:{sl*DSLOT + (hh*28+16*s_+8*j)*64}")
            if u < 3: k.e(f"s_branch {Lj}\n{Ln}:")
        k.e(f"{Lj}:\ns_waitcnt lgkmcnt(0)")
        if p == 3:
            k.e("s_mov_b32 exec_lo, 0")
            for q in range(4): k.e(f"v_mov_b32 v{WOF+32*q+30}, 0\nv_mov_b32 v{WOF+32*q+31}, 0")
            k.e("s_mov_b32 exec_lo, -1")
    def x_r():
        k.e(f"s_waitcnt vmcnt({vw('x')})")
        for g_ in range(4): k.e(f"ds_read_b64 {v(XR+2*g_,2)}, v{vX} offset:{16*g_}")
        k.e("s_waitcnt lgkmcnt(0)")
    def e_r(p, sl):
        k.e(f"s_waitcnt vmcnt({vw(('e', p))})")
        for h in range(7*p, 7*p+7):
            for i in range(2): k.e(f"ds_read_b64_tr_b16 {v(EWA+8*(h>>1)+4*i+2*(h&1),2)}, v{22+i} offset:{sl*DSLOT + (h-7*p)*1024}")
        k.e("s_waitcnt lgkmcnt(0)")
    def one(tag, *a_): dma(k, *a_); vm.append(tag)
    def tch(sr, terms, const, nl, stride=128):
        lin(k, sT1, terms, const); k.e(f"s_mov_b32 exec_lo, {hex((1 << min(nl, 32)) - 1)}\ns_mov_b32 exec_hi, {hex((1 << max(nl-32, 0)) - 1)}")
        touch(k, sr, sT1, 1, stride); k.e("s_mov_b64 exec, -1"); vm.append("t")
    def pf_gu(c):
        k.e(f"s_lshr_b32 s{sT2}, s2, 3\ns_lshr_b32 s{sT0}, s{sU}, 1"); tch(sW2, [(sT2, 2*3584), (sT0, 3584)], c*64*3584, 28)
    def pf_wo():
        k.e(f"s_lshr_b32 s{sT2}, s2, 3"); tch(sW, [(sT2, 100*128), (sU, 25*128)], 0, 25)
    def pf_wd(h):
        if h < 0: tch(sW, [(sG, 16*8192), (sJ, 8192), (sU, 2048)], 0, 16)
        else: k.e(f"s_lshr_b32 s{sT2}, s2, 3"); tch(sW, [(sT2, 25*128), (sU, 448*896)], (h+1)*112*896, 25)
    def pre():
        if O.stM == "": tch(sWS, [(sG, 4*112*1024), (sU, 112*1024), (sJ, 7*1024)], MF, 56)
        if O.stO == "" and not O.xmap: tch(sWS, [(sG, 4*32768), (sU, 32768), (sJ, 2048)], OF, 16)
        if O.stH == "":
            tch(sWS, [(sTT, 28*1024), (sNQ, 7*1024), (sU, 1792)], HF, 14); tch(sWS, [(sTT, 4096), (sNQ, 1024), (sU, 256)], STP, 2)
        tch(sWS, [(sG, 4*128), (sU, 128)], FB, 3, FC-FB)
    F = lambda f, *a_: (lambda: f(*a_))
    f_wo = lambda p, sl: [[F(one, ("wo", p), vD, sW, sWM, sl*DSLOT + i*1024, sB, (p*112 + i*16)*896)] for i in range(7)]
    f_e = lambda p, sl: [[F(one, ("e", p), EvD, sW, sWM, sl*DSLOT + i*1024, sEO, (p*56 + i*8)*896)] for i in range(7)]
    f_dw = lambda c: [[F(one, ("dw", c), vWa+i, sW2, sWM, c*DSLOT + i*1024, sWO, c*64*3584)] for i in range(7)]
    def xset(): k.e(f"s_mul_i32 s{sT1}, s{sTT}, {32*896}\ns_add_u32 s{sB}, s{sB}, s{sT1}")
    f_x = lambda: [[F(one, "x", vD, sX, sWM, i*1024, sB, i*16*896)] for i in range(2)]
    def after(pre_, fill): fill[0] = pre_ + fill[0]; return fill
    stream = f_wo(0,0) + f_wo(1,1) + f_dw(2) + after([F(wo_r,0,0)], f_wo(2,0)) + after([F(wo_r,1,1)], f_wo(3,1)) + after([F(wo_r,2,0), F(srd, k, sW, 6, 1792*896)], f_e(0,0)) \
           + after([F(wo_r,3,1)], f_e(1,1)) + after([F(e_r,0,0), xset], f_x()) + after([F(e_r,1,1)], f_dw(1)) + after([x_r], f_dw(0))
    if O.ord3: stream = f_wo(0,0) + f_wo(1,1) + f_wo(2,2) + after([F(wo_r,0,0)], f_wo(3,0)) + after([F(wo_r,1,1), F(srd, k, sW, 6, 1792*896)], f_e(0,1)) + after([F(wo_r,2,2)], f_e(1,2)) \
           + after([F(wo_r,3,0), xset], f_x()) + after([F(e_r,0,1)], f_dw(1)) + after([x_r, F(e_r,1,2)], f_dw(0))
    jobs = [[] for _ in range(16)]
    def wd0(): srd(k, sW, 6, 1792*896); pf_wd(-1); srd(k, sW, 2, 448*896)
    def gu0(): k.e(f"s_lshr_b32 s{sT0}, s{sU}, 1"); tch(sW2, [(2, 50*128), (sT0, 25*128)], 0, 25)
    for f, sl in zip((pf_wo, gu0, wd0, pre), O.js):
        if f is pre or not O.mwarm: jobs[sl].append(f)
    i = 0
    for sl, n in enumerate(O.per):
        for f in stream[i:i+n]: jobs[1+sl] += f
        i += n
    assert i >= len(stream)
    for c, sl in O.pfgu.items(): jobs[sl].append(F(pf_gu, c))
    for h, sl in enumerate(O.pfwd): jobs[sl].append(F(pf_wd, h))
    if O.nojobs: jobs = [[] for _ in range(16)]; pass
    if not O.xmap: k.e("s_barrier")
    lin(k, sT1, [(HD(), 256), (sU, 64)], FA)
    stamp(k, 2)
    poll(k, vC, sT1, 16)
    stamp(k, 3)
    kv(1)
    if O.xmap: k.e("s_barrier")
    kv(2)
    for t in range(15):
        if t < 14: stamp(k, t+1, "B0")
        k.e(f"s_waitcnt vmcnt({vw(('kv', t+1))})")
        if t < 14: stamp(k, t+1, "B1")
        k.e("s_barrier")
        if t < 14: stamp(k, t+1, "B2")
        if t == 0: kv(3)
        if t + 4 < 16: kv(t+4)
        for f in jobs[t+1]: f()
    stamp(k, 5)
    Lre, Lok, Lfb = k.label("Hre"), k.label("Hok"), k.label("Hfb")
    k.e(f"s_mov_b32 s{sPASS}, 0\nv_add_u32 v{vD}, {LA}, v{vA}\n{Lre}:\ns_waitcnt vmcnt(0) lgkmcnt(0)\ns_barrier\nds_read_b128 v[20:23], v{vD}\nds_read_b128 v[24:27], v{vD} offset:1024\ns_waitcnt lgkmcnt(0)")
    lcheck(k, 20, Lok, Lfb, sPASS)
    k.e("s_barrier")
    def fallback():
        Lf = k.label("Hfl")
        k.e(f"{Lfb}:\ns_mov_b32 s{sPASS}, 0\n" + "s_barrier\n"*3 + f"""{Lf}:
        s_and_b32 s{sT1}, s{sPASS}, 3
        s_lshl_b32 s{sT1}, s{sT1}, 12
        s_add_u32 m0, s{sKM}, s{sT1}
        s_lshl_b32 s{sT0}, s{sPASS}, 14
        s_add_u32 s{sT0}, s{sT0}, s{sKV}""")
        for i in range(4): k.e(f"buffer_load_dwordx4 v{vA}, {WS}, s{sT0} offen offset:{1024*i} sc1 lds")
        k.e(f"s_add_u32 s{sPASS}, s{sPASS}, 1\ns_cmp_lt_u32 s{sPASS}, 16\ns_waitcnt vmcnt(0)\ns_barrier\ns_cbranch_scc1 {Lf}\ns_branch {Lre}")
    return fallback

def C_help(k):
    sWO, sWM, sB, sNQ, sTT = 36, 37, 38, 60, 61
    OFR, ACC, XR, TM = 16, 40, 56, 64
    if O.cpf:
        k.e(f"v_lshlrev_b32 v{vT2}, 7, v{vL}\ns_lshr_b32 s{sT2}, s2, 3\ns_lshr_b32 s{sB}, s{sU}, 1\ns_mov_b32 exec_hi, 0")
        for w, c in O.cpf:
            if w == 'g': lin(k, sT1, [(sT2, 2*3584), (sB, 3584)], c*64*3584)
            else: lin(k, sT1, [(sT2, 25*128), (sU, 448*896)], (c+1)*112*896)
            sr = sW2 if w == 'g' else sW
            k.e(f"s_mov_b32 exec_lo, {hex((1 << (28 if w == 'g' else 25)) - 1)}\nbuffer_load_dword v{TM}, v{vT2}, s[{sr}:{sr+3}], s{sT1} offen sc1")
        k.e("s_mov_b64 exec, -1")
    k.e(f"v_lshlrev_b32 v{vT2}, 2, v{vL}")
    lin(k, sT1, [(sTT, 128), (sU, 16)], FB); lin(k, sB, [(sTT, 32768), (sU, 8192)], OF); lin(k, sT2, [(sU, 8192)], OBUF)
    for q in range(4): k.e(f"s_add_u32 s{sT0}, s{sU}, {q}\ns_and_b32 s{sT0}, s{sT0}, 3\ns_lshl_b32 s{sT0}, s{sT0}, 13\ns_add_u32 s{sT0}, s{sT0}, {OBUF}\nv_add_u32 v{68+q}, s{sT0}, v{vA}")
    for r in range(8): k.e(f"v_lshlrev_b32 v{ACC+2*r}, 16, v{XR+r}\nv_and_b32 v{ACC+2*r+1}, 0xffff0000, v{XR+r}")
    stamp(k, 8)
    poll(k, vT2, sT1, 4)
    stamp(k, 9)
    for h in range(2):
        k.e(f"s_add_u32 m0, s{sT2}, {4096*h}\ns_add_u32 s{sT0}, s{sB}, {4096*h}")
        for i in range(4): k.e(f"buffer_load_dwordx4 v{vA}, {WS}, s{sT0} offen offset:{1024*i} sc1 lds")
    def rd(i):
        if i in (0, 4): k.e(f"s_waitcnt vmcnt({4-i})")
        if i == 8: k.e("s_barrier"); stamp(k, 10)
        k.e(f"ds_read_b128 {v(OFR+4*(i%6),4)}, v{68+(i>>3)} offset:{(i&7)*1024}")
    for i in range(5): rd(i)
    for i in range(32):
        nrd = {3: [], 4: [], 5: [8, 9, 10]}.get(i, [i+5] if i + 5 < 32 else [])
        k.e(f"s_waitcnt lgkmcnt({ {4: 3, 5: 2}.get(i, min(4, 31-i)) })\n{MF32} {v(ACC,16)}, {v(WOF+4*i,4)}, {v(OFR+4*(i%6),4)}, {v(ACC,16)}")
        for j in nrd: rd(j)
    Lw = k.label("noep")
    k.e(f"s_cmp_lg_u32 s2, 0\ns_cbranch_scc1 {Lw}\nv_mov_b32 v{vT}, s{sNON}\ns_mov_b32 s{sT0}, {FLG}\nbuffer_store_dword v{vT}, off, {WS}, s{sT0} sc1\n{Lw}:")
    k.e(f"s_and_b32 s{sB}, s{sNQ}, 1"); lin(k, sT1, [(sTT, 28*1024), (sNQ, 7*1024), (sU, 2048), (sB, -1024)], HF)
    k.e(f"s_lshl_b32 s4, s{sB}, 2\ns_add_u32 s4, s4, s{sU}")
    k.e(f"s_lshr_b32 s{sT0}, s{sU}, 1\ns_and_b32 s{sB}, s{sU}, 1"); lin(k, sT2, [(sTT, 4096), (sNQ, 1024), (sT0, 512), (sB, 8)], STP)
    for r in range(4): k.e(f"v_mov_b32 v{TM+r}, 0")
    for h in range(2):
        L3 = k.label("C3")
        k.e(f"s_cmp_eq_u32 s4, {4-h}\ns_cbranch_scc1 {L3}")
        for r in range(4*h, 4*h+4): k.e(f"v_cvt_pk_bf16_f32 v{XR+r}, v{ACC+2*r}, v{ACC+2*r+1}")
        k.e(f"buffer_store_dwordx4 {v(XR+4*h,4)}, v{vA}, {WS}, s{sT1} offen offset:{1024*h} {O.stH}")
        for r in range(8*h, 8*h+8): k.e(f"v_add_f32 v{TM+2*(r&1)}, v{TM+2*(r&1)}, v{ACC+r}\nv_fmac_f32 v{TM+2*(r&1)+1}, v{ACC+r}, v{ACC+r}")
        if h == 0: k.e(L3 + ":")
    k.e(f"""{L3}:
    v_add_f32 v{TM}, v{TM}, v{TM+2}
    v_add_f32 v{TM+1}, v{TM+1}, v{TM+3}
    v_mov_b32 v{TM+2}, v{TM}
    v_mov_b32 v{TM+3}, v{TM+1}
    s_nop 0
    v_permlane32_swap_b32 v{TM}, v{TM+2}
    v_permlane32_swap_b32 v{TM+1}, v{TM+3}
    s_mov_b32 exec_hi, 0
    v_add_f32 v{TM}, v{TM}, v{TM+2}
    v_add_f32 v{TM+1}, v{TM+1}, v{TM+3}
    buffer_store_dwordx2 {v(TM,2)}, v{vA}, {WS}, s{sT2} offen {O.stH}""")
    if not O.c2late: k.e("s_barrier")
    lin(k, sT1, [(sTT, 128), (sNQ, 16), (sU, 4)], FC)
    signal(k, sT1, True, O.stH == "sc1")
    if O.c2late: k.e("s_barrier")
    stamp(k, 11)

EP = [2*DSLOT, 3*DSLOT, 4*DSLOT, 0]
def DE_help(k):
    sWO, sWM, sEM, sSG, sTT, sXA, sXB = 36, 37, 39, 60, 61, 62, 63
    vWa, vD, vR = 8, EvD, EvR
    ACC, XF, HR = 8, 128, 192
    WR = lambda ks: EWA + 8*(ks % 14) if ks % 14 < 7 else EWB + 8*(ks % 14 - 7)
    Lno, Lend = k.label("noE"), k.label("Eend")
    cs_setup(k, 3)
    for t in range(7): k.e(f"ds_read_b32 v{CA+4*t}, v{vCh+1} offset:{256*t}\nv_mov_b32 v{CA+4*t+1}, 0\nv_mov_b32 v{CA+4*t+2}, 0\nv_mov_b32 v{CA+4*t+3}, 0")
    k.e("s_waitcnt lgkmcnt(0)")
    def cs(c): cs_chunk(k, c, O.hpd, O.hcp)
    def cw(_):
        k.e(f"s_lshr_b32 s{sT0}, s{sU}, 1\ns_and_b32 s{sT1}, s{sU}, 1"); lin(k, sT0, [(sT0, 512), (sT1, 8)], STG)
        k.e(f"s_setprio 2\nv_add_u32 v{vT2}, s{sT0}, v{vA}\ns_mov_b32 exec_hi, 0")
        for t in range(7):
            b = CA+4*t
            k.e(f"v_cvt_pk_bf16_f32 v{b+3}, v{b}, 0\nv_lshlrev_b32 v{b+1}, 16, v{b+3}\nv_sub_f32 v{b+1}, v{b}, v{b+1}\nv_cvt_pk_bf16_f32 v{b+2}, v{b}, v{b+1}\nds_write_b64 v{vT2}, {v(b+2,2)} offset:{1024*t}")
        k.e("s_mov_b32 exec_hi, -1\ns_waitcnt lgkmcnt(0)")
    k.e(f"s_cmp_ge_u32 s{sJ}, 14\ns_cbranch_scc1 {Lno}\ns_and_b32 s{sT0}, s{sJ}, 1")
    lin(k, sTT, [(sG, 4), (sT0, 2)]); lin(k, sEM, [(sU, 7168)]); lin(k, sSG, [(sU, 4096)], STG)
    k.e(f"v_add_u32 v16, s{sSG}, v{vR}\nv_add_u32 v17, s{sSG}, v{vR+1}\nv_add_u32 v{vR}, s{sEM}, v{vR}\nv_add_u32 v{vR+1}, s{sEM}, v{vR+1}")
    vm = []
    def vw(x): return len(vm) - 1 - max(i for i, o in enumerate(vm) if o == x)
    def si(r):
        for i in range(4 if r < 3 else 2): dma(k, vD, sW, sSG, i*1024, sEO, (112 + 32*r + 8*i)*896); vm.append(("s", r))
    def sr(r):
        k.e(f"s_waitcnt vmcnt({vw(('s', r))})")
        for s_ in range(2 if r < 3 else 1):
            for i in range(2):
                for j in range(2): k.e(f"ds_read_b64_tr_b16 {v(WR(7+2*r+s_)+4*i+2*j,2)}, v{16+i} offset:{(16*s_+8*j)*128}")
        k.e("s_waitcnt lgkmcnt(0)")
    def pc(p):
        for i in range(7): dma(k, vD, sW, sEM, EP[p] + i*1024, sEO, (224 + 56*p + 8*i)*896); vm.append(("p", p))
    def dw(c): dw_issue(k, c, vWa, sWO, sWM); vm.extend([("d", c)]*7)
    def ep(_):
        k.e(f"s_lshr_b32 s{sT0}, s{sU}, 1\ns_add_u32 s{sT1}, s{sTT}, s{sT0}\ns_xor_b32 s{sT2}, s{sT1}, 1\ns_and_b32 s{sT0}, s{sU}, 1")
        lin(k, sXA, [(sT1, 112*1024), (sU, 28*1024)], MF); lin(k, sXB, [(sT2, 112*1024), (sU, 28*1024)], MF)
        lin(k, sT2, [(sT1, 28*1024), (sNB, 4096), (sT0, 2048)], HF)
        lin(k, sSG, [(sT1, 32*896), (sNB, 128), (sT0, 64)])
        for h in range(2): k.e(f"buffer_load_dwordx4 {v(HR+4*h,4)}, v{vA}, {WS}, s{sT2} offen offset:{1024*h} sc1"); vm.append('h')
        lin(k, sT2, [(sT1, 4096)], STP)
        for h in range(4): k.e(f"buffer_load_dwordx4 {v(XF+4*h,4)}, v{vA}, {WS}, s{sT2} offen offset:{1024*h} sc1"); vm.append('h')
    plan = eval(O.dplan); plan[5].append((ep, 0))
    def run(plan):
        for c in range(7):
            for f, a_ in plan[c]:
                if f is cs and ('d', a_) in vm: k.e(f"s_waitcnt vmcnt({vw(('d', a_))})")
            k.e("s_barrier")
            for f, a_ in plan[c]: f(a_)
    for f, a_ in eval(O.dpre): f(a_)
    run(plan)
    lin(k, sEO, [(sSG, 1)])
    srd(k, sW, 7, 2048*896)
    k.e(f"v_and_b32 v{vT2}, 3, v{vL}\nv_lshlrev_b32 v{vT2}, 2, v{vT2}\nv_bfe_u32 v{vT}, v{vL}, 2, 1\nv_lshl_add_u32 v{vT2}, v{vT}, 7, v{vT2}")
    lin(k, sT1, [(sTT, 128), (sU, 16)], FD)
    k.e(f"s_waitcnt vmcnt({vw('h')})")
    for d in (8, 4, 2):
        for r in range(d): k.e(f"v_add_f32 v{XF+r}, v{XF+r}, v{XF+d+r}")
    halfop(k, XF, vT); halfop(k, XF+1, vT); ln_fin(k, XF, XF+1)
    k.e(f"v_rcp_f32 v0, v{XF+1}\nv_add_u32 v{vD}, {EP[0]}, v{vR+1}")
    stamp(k, 12)
    poll(k, vT2, sT1, 8)
    stamp(k, 13)
    k.e(f"v_add_u32 v{vT2}, {EP[0]}, v{vR}")
    def xld(ks):
        o = [f"buffer_load_dwordx4 {v(XF+8*(ks&7)+4*a_,4)}, v{vA}, {WS}, s{sXA+a_} offen offset:{1024*(ks&3)} sc1" for a_ in range(2)]
        return o + ([f"s_add_u32 s{sXA}, s{sXA}, 4096", f"s_add_u32 s{sXB}, s{sXB}, 4096"] if ks & 3 == 3 else [])
    nx = O.ex0
    for ks in range(nx):
        for o in xld(ks): k.e(o)
    def wrd(ks):
        o = []
        for i in range(2):
            for j in range(2):
                row = 16*(ks-14) + 8*j; p = row // 56
                o.append(f"ds_read_b64_tr_b16 {v(WR(ks)+4*i+2*j,2)}, v{(vR if p == 3 else vT2)+i} offset:{(0 if p == 3 else EP[p]-EP[0]) + (row % 56)*128}")
        return o
    for ks in range(28):
        k.e(f"s_waitcnt vmcnt({2*(nx-1-ks)})" + (" lgkmcnt(0)" if ks in (14, 15) else ""))
        ex = []
        for _ in range(2 if ks < O.exn else 1):
            if nx < 28 and nx < ks + 8: ex += xld(nx); nx += 1
        ex += wrd(ks+13) if 1 <= ks <= 14 else []
        for n, i in enumerate((3, 1, 2, 0)):
            acc = v(ACC+16*i,16)
            k.e(f"{MF32} {acc}, {v(WR(ks)+4*(i&1),4)}, {v(XF+8*(ks&7)+4*(i>>1),4)}, {'0' if ks == 0 else acc}")
            for o in ex[3*n:3*n+3]: k.e(o)
    stamp(k, 14)
    WR = 56
    k.e(f"v_add_u32 v{vT}, s{sEM}, v{vA}\nv_add_u32 v{vT}, {EP[0]}, v{vT}")
    for i in range(1, 4):
        k.e(f"s_xor_b32 s{sT0}, s{sU}, {i}"); lin(k, sT0, [(sT0, 7168)], EP[i-1]); k.e(f"v_add_u32 v{vT2+i}, s{sT0}, v{vA}")
    for i in (3, 1, 2):
        for h in range(4): k.e(f"ds_write_b128 v{vT}, {v(ACC+16*i+4*h,4)} offset:{EP[i-1]-EP[0] + h*1024}")
    k.e(f"v_and_b32 v{vT}, 31, v{vL}\nv_mul_u32_u24 v{vT2}, 896, v{vT}\nv_lshrrev_b32 v{vT}, 5, v{vL}\nv_lshl_add_u32 v{vT2}, v{vT}, 4, v{vT2}")
    for r in range(8): k.e(f"v_lshlrev_b32 v{XF+16+2*r}, 16, v{HR+r}\nv_and_b32 v{XF+17+2*r}, 0xffff0000, v{HR+r}")
    k.e("s_waitcnt lgkmcnt(0)\ns_barrier")
    for h in range(4):
        for i in range(1, 4): k.e(f"ds_read_b128 {v(WR+16*i+4*h,4)}, v{vT2+i} offset:{h*1024}")
    for h in range(4):
        k.e(f"s_waitcnt lgkmcnt({9-3*h})")
        for r in range(4*h, 4*h+4): k.e(f"v_add_f32 v{ACC+r}, v{ACC+r}, v{WR+16+r}\nv_add_f32 v{WR+32+r}, v{WR+32+r}, v{WR+48+r}")
        for r in range(4*h, 4*h+4): k.e(f"v_add_f32 v{ACC+r}, v{ACC+r}, v{WR+32+r}")
        for r in range(4*h, 4*h+4): k.e(f"v_fma_f32 v{ACC+r}, v{ACC+r}, v0, v{XF+16+r}")
        for r in range(2*h, 2*h+2): k.e(f"v_cvt_pk_bf16_f32 v{XF+r}, v{ACC+2*r}, v{ACC+2*r+1}")
        if h & 1:
            b = XF + 2*(h-1)
            k.e(f"s_nop 1\nv_permlane32_swap_b32 v{b}, v{b+2}\nv_permlane32_swap_b32 v{b+1}, v{b+3}\nbuffer_store_dwordx4 {v(b,4)}, v{vT2}, s[{sW}:{sW+3}], s{sEO} offen offset:{16*(h-1)} {O.stOut}")
    k.e(f"s_branch {Lend}\n{Lno}:")
    vm.clear(); k.e('s_nop 0'); run([[j for j in p if j[0] in (dw, cs, cw)] for p in plan])
    k.e(Lend + ":")

O.anp = 2
def build(wait=False):
    k = K(NAME); k.label = (lambda f: (lambda b: f(b).replace(NAME, "k")))(k.label)
    prolog(k)
    Lm = k.label("main")
    k.e(f"s_cmp_lt_u32 s{sWAVE}, 4\ns_cbranch_scc1 {Lm}")
    k.e(f"s_setprio {O.hpa}"); A_help(k); k.e(f"s_setprio 2"); fh = B_help(k); C_help(k); k.e(f"s_setprio {O.hpd}"); DE_help(k); stamp_out(k); k.e("s_endpgm")
    k.e(f"{Lm}:\ns_setprio 1")
    A_main(k); fb = B_main(k); D_main(k); stamp_out(k); k.e("s_endpgm"); fb(); fh(); k.e("L_k_end:")
    ks, la = [k.text(256)], [(NAME, 256, 512, 163840)]
    if wait:
        for nm, off, w in (("wait_kernel", 0, int(wait)), ("tail_kernel", 8, 0)):
            t = K(nm); L = t.label("l")
            t.e(f"""s_memrealtime s[16:17]
            s_load_dwordx2 s[8:9], s[0:1], 72
            s_mov_b32 s10, {WSREC}
            s_mov_b32 s11, 0x20000
            s_waitcnt lgkmcnt(0)
            {L}:
            s_memrealtime s[18:19]
            s_waitcnt lgkmcnt(0)
            s_sub_u32 s20, s18, s16
            s_cmp_lt_u32 s20, {w}
            s_cbranch_scc1 {L}
            v_mov_b32 v2, s16
            v_mov_b32 v3, s18
            s_mov_b32 s21, {TS + 0x40000 + off}
            buffer_store_dwordx2 v[2:3], off, s[8:11], s21 sc1
            s_endpgm""")
            ks.append(t.text(8))
        la = [("wait_kernel", 1, 64, 0)] + la + [("tail_kernel", 1, 64, 0)]
    return build_file(la, ks)
if __name__ == "__main__":
    open("fused.s", "w").write(build())
```

```python
import fz, sys
for a in sys.argv[1:]:
    tag, _, o = a.partition(":")
    opts = eval(f"dict({o})")
    old = {k_: getattr(fz.O, k_) for k_ in opts}
    for k_, v_ in opts.items(): setattr(fz.O, k_, v_)
    open(f"v_{tag}.s", "w").write(fz.build())
    for k_, v_ in old.items(): setattr(fz.O, k_, v_)
```

```python
from asmlib import *
import math, struct
def f2u(x): return struct.unpack("<I", struct.pack("<f", x))[0]
KVF, OF, HF, MF, FLG = 0x200000, 0x600000, 0x800000, 0xA00000, 0x1200000
HELLO, FA, FCS, FB, FC, FD = FLG+0x1000, FLG+0x2000, FLG+0x4000, FLG+0x5000, FLG+0x8000, FLG+0xB000
CSP, STP, TS, WSREC = 0x1240000, 0x12C0000, 0x1300000, 0x1400000
sX, sW, sW2, sWS = 8, 12, 16, 20
sWAVE, sG, sJ, sT0, sT1, sT2, sT3, sU = 28, 29, 30, 31, 32, 33, 34, 35
sNON, sSLOW, sCNT = 24, 25, 26
PTR = 40
vL, vA, vT, vT2 = 1, 2, 3, 4
MF32 = "v_mfma_f32_32x32x16_bf16"; MF16 = "v_mfma_f32_16x16x32_bf16"
WS = f"s[{sWS}:{sWS+3}]"
NAME = "sequential_preLN__mha_block__glu_gated_reglu__prompt_kernel"
class O:
    stamp = False; clk = "s_memrealtime"
    xmap = True; ipf = 12; dbg = None; stOut = ""; wb = False; stO = ""; stH = ""; stM = "sc1"
    ldKV = "sc1"; force_slow = False; grp = ''; hpa = 0; mwarm = True; ord3 = True; early3 = True; dpre = '[(si,0),(sr,0),(si,1)]'; dplan = '[[(sr,1),(si,2)], [(dw,5),(cs,4),(sr,2),(si,3)], [(dw,6),(sr,3),(pc,0)], [(cs,5),(pc,1)], [(cs,6),(cw,0),(pc,2)], [(pc,3)], []]'; awarm = 1; tw = 1; twl = 16; stMn = 7; ests = 3; hcp = 2; cpf = []; c2late = True; csp = 0; hpd = 0; js = [1,1,2,10]; hset = 2; pres = 13; per = [0,0,0,0,0,6,6,6,6,6,7,7,7,7]; nojobs = False; late0 = 11; lates = 2; hprio = 2; exn = 2; dx0 = 4; ex0 = 3; pfgu = {2:12,3:13,4:15}; pfwd = []; apf = None; apos = 2; asig = 14
DSLOT, DUP = 28832, 14336+160
RD, LA, STG = 86528, 152064, 147456
OBUF, CSH = 115456, STG + 2048

def stamp(k, i, grp=""):
    if O.stamp and (i == 0 or grp == O.grp): k.e(f"{O.clk} s[{68+2*i}:{69+2*i}]")
def stamp_out(k):
    if not O.stamp: return
    k.e(f"s_waitcnt vmcnt(0)\n{O.clk} s[98:99]\ns_waitcnt lgkmcnt(0)")
    if O.dbg is not None:
        Lx = k.label("dbg")
        k.e(f"s_cmp_lg_u32 s2, 17\ns_cbranch_scc1 {Lx}\ns_cmp_lg_u32 s{sWAVE}, {O.dbg}\ns_cbranch_scc1 {Lx}\ns_mov_b64 exec, 1")
        srd(k, sX, 8, 256)
        for i in range(16): k.e(f"s_sub_u32 s3, s{68+2*i}, s68\nv_mov_b32 v4, s3\nbuffer_store_dword v4, off, s[{sX}:{sX+3}], 0 offset:{4*i}")
        k.e(Lx + ":")
        return
    k.e(f"s_lshl_b32 s3, s2, 3\ns_add_u32 s3, s3, s{sWAVE}\ns_lshl_b32 s3, s3, 6\ns_add_u32 s3, s3, {TS}\nv_mov_b32 v2, 0\ns_mov_b64 exec, 1")
    for j in range(4):
        for i in range(4): k.e(f"v_mov_b32 v{4+i}, s{68+2*(4*j+i)}")
        k.e(f"buffer_store_dwordx4 v[4:7], v2, {WS}, s3 offen offset:{16*j}\ns_nop 1")
def srd(k, d, slot, nbytes):
    k.e(f"s_mov_b32 s{d}, s{PTR+2*slot}\ns_mov_b32 s{d+1}, s{PTR+2*slot+1}\ns_mov_b32 s{d+2}, {nbytes}\ns_mov_b32 s{d+3}, 0x20000")
def dma(k, va, sr, m0base, m0off, sbase, soff, fl=""):
    k.e(f"s_add_u32 m0, s{m0base}, {m0off}\ns_add_u32 s{sT0}, s{sbase}, {soff}\nbuffer_load_dwordx4 v{va}, s[{sr}:{sr+3}], s{sT0} offen {fl} lds")
def lin(k, d, terms, const=0):
    first = True
    for r, m in terms:
        t = d if first else sT3
        k.e(f"s_mul_i32 s{t}, s{r}, {m}")
        if not first: k.e(f"s_add_u32 s{d}, s{d}, s{sT3}")
        first = False
    if const: k.e(f"s_add_u32 s{d}, s{d}, {const}")
def halfop(k, r, t, op="v_add_f32"):
    k.e(f"v_mov_b32 v{t}, v{r}\ns_nop 1\nv_permlane32_swap_b32 v{r}, v{t}\ns_nop 1\n{op} v{r}, v{r}, v{t}")
def ln_fin(k, vS, vSS):
    k.e(f"""v_mul_f32 v{vS}, {hex(f2u(-1.0/448))}, v{vS}
    v_mul_f32 v{vSS}, {hex(f2u(1.0/448))}, v{vSS}
    v_fma_f32 v{vSS}, -v{vS}, v{vS}, v{vSS}
    v_max_f32 v{vSS}, 0, v{vSS}
    v_add_f32 v{vSS}, {hex(f2u(1e-5))}, v{vSS}""")
def div14(k, vq, vr, vg, t):
    k.e(f"v_mul_u32_u24 v{vq}, 4682, v{vg}\nv_lshrrev_b32 v{vq}, 16, v{vq}\nv_mul_u32_u24 v{t}, 14, v{vq}\nv_sub_u32 v{vr}, v{vg}, v{t}")
def tr_addr(k, vd, t, pitch, nbstep, hfrows=4):
    k.e(f"""v_bfe_u32 v{t}, v{vL}, 2, 2
    v_lshrrev_b32 v{vd}, 5, v{vL}
    v_lshl_add_u32 v{t}, v{vd}, {int(math.log2(hfrows))}, v{t}
    v_mul_u32_u24 v{vd}, {pitch}, v{t}
    v_bfe_u32 v{t}, v{vL}, 4, 1
    v_mul_u32_u24 v{t}, {nbstep}, v{t}
    v_add_u32 v{vd}, v{vd}, v{t}
    v_and_b32 v{t}, 3, v{vL}
    v_lshl_add_u32 v{vd}, v{t}, 3, v{vd}""")
def signal(k, soff, local, wt=False, vm=0):
    k.e(f"v_mov_b32 v{vT}, s{sNON}\ns_waitcnt vmcnt({vm})\ns_mov_b64 exec, 1")
    if local:
        Ls, Lj = k.label("sl"), k.label("sj")
        k.e(f"""s_cmp_lg_u32 s{sSLOW}, 0
        s_cbranch_scc1 {Ls}
        buffer_store_dword v{vT}, off, {WS}, s{soff}
        s_branch {Lj}
        {Ls}:
        {"" if wt else "buffer_wbl2 sc1"}
        s_waitcnt vmcnt(0)
        buffer_store_dword v{vT}, off, {WS}, s{soff} sc1
        {Lj}:""")
    else: k.e(f"buffer_store_dword v{vT}, off, {WS}, s{soff} sc1")
    k.e("s_mov_b64 exec, -1")
def poll(k, va, soff, nl, vd=vT, mask=None):
    Lp, Ld = k.label("poll"), k.label("pd")
    k.e(f"s_mov_b32 exec_lo, {hex((1 << nl) - 1)}\ns_mov_b32 exec_hi, 0\ns_mov_b32 s{sCNT}, 0\n{Lp}:\nbuffer_load_dword v{vd}, v{va}, {WS}, s{soff} offen sc1\ns_add_u32 s{sCNT}, s{sCNT}, 1\ns_cmp_gt_u32 s{sCNT}, 0x40000\ns_waitcnt vmcnt(0)\ns_cbranch_scc1 {Ld}")
    if mask: k.e(f"v_xor_b32 v{vd}, s{sNON}, v{vd}\nv_cmp_lt_u32 vcc, {mask}, v{vd}")
    else: k.e(f"v_cmp_ne_u32 vcc, s{sNON}, v{vd}")
    k.e(f"s_cbranch_vccnz {Lp}\n{Ld}:")
    if not mask:
        Lf = k.label("pf")
        k.e(f"s_cmp_eq_u32 s{sSLOW}, 0\ns_cbranch_scc1 {Lf}\nbuffer_inv sc1\ns_waitcnt vmcnt(0)\n{Lf}:\ns_mov_b64 exec, -1")
def hello_check(k, sT1=sT1):
    k.e(f"v_lshlrev_b32 v{vT2}, 2, v{vL}"); lin(k, sT1, [(sG, 128)], HELLO)
    poll(k, vT2, sT1, 16, mask=15)
    k.e(f"s_getreg_b32 s{sT1}, hwreg(HW_REG_XCC_ID, 0, 4)\nv_cmp_ne_u32 vcc, s{sT1}, v{vT}\ns_nop 1\ns_cmp_lg_u64 vcc, 0\ns_cselect_b32 s{sSLOW}, 1, {1 if O.force_slow else 0}\ns_mov_b64 exec, -1")
def touch(k, sr, soff, n, stride=128):
    k.e(f"v_mul_u32_u24 v{vT2}, {stride}, v{vL}")
    for i in range(n):
        k.e(f"buffer_load_dword v71, v{vT2}, s[{sr}:{sr+3}], s{soff} offen sc1")
        if i < n-1: k.e(f"s_add_u32 s{soff}, s{soff}, {64*stride}")

def prolog(k):
    Lok = k.label("go")
    k.e(f"s_cmp_lt_u32 s2, 256\ns_cbranch_scc1 {Lok}\ns_endpgm\n{Lok}:")
    stamp(k, 0)
    k.e(f"""s_load_dwordx16 s[{PTR}:{PTR+15}], s[0:1], 0
    s_load_dwordx4 s[{PTR+16}:{PTR+19}], s[0:1], 64
    v_and_b32 v{vL}, 63, v0
    v_lshrrev_b32 v{vA}, 6, v0
    s_and_b32 s{sG}, s2, 7
    v_readfirstlane_b32 s{sWAVE}, v{vA}
    s_lshr_b32 s{sJ}, s2, 3
    s_lshr_b32 s{sT0}, s{sJ}, 4
    s_lshl_b32 s{sG}, s{sG}, 1
    s_add_u32 s{sG}, s{sG}, s{sT0}
    s_and_b32 s{sJ}, s{sJ}, 15
    s_and_b32 s{sU}, s{sWAVE}, 3
    v_lshlrev_b32 v{vA}, 4, v{vL}
    s_mov_b32 s{sSLOW}, 0""")
def ptrs(k):
    k.e(f"""s_waitcnt lgkmcnt(0)
    s_add_u32 s4, s{PTR+18}, {FLG}
    s_addc_u32 s5, s{PTR+19}, 0
    s_load_dword s{sNON}, s[4:5], 0""")
    srd(k, sWS, 9, WSREC); srd(k, sX, 0, 2048*896); srd(k, sW, 1, 448*2688)
def nonce(k):
    k.e(f"s_waitcnt lgkmcnt(0)\ns_mul_i32 s{sNON}, s{sNON}, 0x9E3779B1\ns_add_u32 s{sNON}, s{sNON}, 0x7F4A7C15")

ASLOT, AXB, ANS = 24576, 16384, 5
AWQ = 2*ASLOT; AEX = 154368; AQ = 155648; ACS = LA; ACQ = 78848
def HD(): return sG if O.xmap else sJ
def TB(): return sJ if O.xmap else sG
Q, OA, S, P, KVS, KV = 8, 140, 40, 72, (124, 88), 204
def B_zero(): return [f"v_mov_b32 v{r}, 0" for r in list(range(P+8, P+16)) + list(range(KVS[1]+8, KVS[1]+16)) + list(range(OA, OA+64))]
def A_main(k):
    vXr, vWr, vWq, SEL, SX, CS, SQ, TM = 8, 12, 13, 16, 20, 24, 36, 40
    vS, vSS, vONE = 5, 6, 7
    WF, ACC, PK, XF = 44, 76, 124, 140
    if O.ipf:
        k.e(f"""s_getpc_b64 s[4:5]
        L_k_pc:
        s_sub_u32 s4, s4, L_k_pc - {NAME}
        s_subb_u32 s5, s5, 0
        s_lshr_b32 s{sT2}, s2, 3
        s_lshl_b32 s{sT2}, s{sT2}, 2
        s_add_u32 s{sT2}, s{sT2}, s{sU}
        s_and_b32 s{sT2}, s{sT2}, 31
        s_mul_i32 s{sT2}, s{sT2}, {O.ipf*128}
        v_lshl_add_u32 v{vT2}, v{vL}, 7, s{sT2}
        v_min_u32 v{vT2}, L_k_end - {NAME} - 4, v{vT2}
        s_mov_b64 exec, {(1 << O.ipf) - 1}
        global_load_dword v255, v{vT2}, s[4:5]
        s_mov_b64 exec, -1""")
    k.e(f"""v_and_b32 v{vT}, 31, v{vL}
    s_lshl_b32 s{sT0}, s{sU}, 5
    v_add_u32 v{vT2}, s{sT0}, v{vT}
    v_lshlrev_b32 v{vT2}, 7, v{vT2}
    v_bfe_u32 v{vT}, v{vL}, 1, 3
    v_lshrrev_b32 v{vXr}, 5, v{vL}
    v_xor_b32 v{vT}, v{vT}, v{vXr}""")
    for s_ in range(4): k.e(f"v_xor_b32 v{vXr+s_}, {2*s_}, v{vT}\nv_lshl_add_u32 v{vXr+s_}, v{vXr+s_}, 4, v{vT2}")
    tr_addr(k, vWr, vS, 64, 32, 8)
    k.e(f"v_add_u32 v{vWq}, {AWQ}, v{vWr}\nv_mov_b32 v{vONE}, 0x3f803f80\nv_lshrrev_b32 v{vS}, 2, v{vL}\nv_xor_b32 v{vS}, v{vS}, v{vL}\nv_and_b32 v{vS}, 4, v{vS}\nv_cmp_eq_u32 vcc, 0, v{vS}")
    for r in range(4): k.e(f"v_mov_b32 v{SQ+r}, 0")
    for r in range(4): k.e(f"v_cndmask_b32 v{SEL+r}, 0, v{vONE}, vcc")
    ptrs(k)
    if O.awarm is not None:
        n = 7 - O.awarm
        k.e(f"s_lshl_b32 s{sT2}, s2, 2\ns_add_u32 s{sT2}, s{sT2}, s{sU}\nv_lshrrev_b32 v{vT}, 1, v{vL}\nv_and_b32 v{vT2}, 1, v{vL}\nv_mul_u32_u24 v{vT2}, 896, v{vT2}\nv_lshl_add_u32 v{vT2}, v{vT}, 7, v{vT2}")
        lin(k, sT1, [(sT2, 2*896)], O.awarm*128)
        k.e(f"s_mov_b64 exec, {(1 << 2*n) - 1}\nbuffer_load_dword v255, v{vT2}, s[{sX}:{sX+3}], s{sT1} offen\nv_lshlrev_b32 v{vT2}, 17, v{vL}")
        lin(k, sT1, [(sT2, 128)], O.awarm*64*2688)
        k.e(f"buffer_load_dword v255, v{vT2}, s[{sW}:{sW+3}], s{sT1} offen\ns_mov_b64 exec, -1")
    if O.tw & 1:
        k.e("s_mov_b64 exec, 1")
        for terms, c in (([(HD(), 64*4096), (TB(), 4*4096), (sU, 4096)], KVF), ([(TB(), 4*32768), (sU, 32768), (HD(), 2048)], OF), ([(sG, 4*112*1024), (sU, 112*1024), (sJ, 7*1024)], MF + 1024)):
            lin(k, sT1, terms, c); k.e(f"buffer_load_dword v255, off, {WS}, s{sT1} sc1")
        k.e("s_mov_b64 exec, -1")
    if O.tw & 2:
        k.e(f"v_lshlrev_b32 v{vT2}, {O.twl}, v{vL}")
        srd(k, sW2, 4, 448*3584)
        for u_, sl in ((1, 5), (2, 6), (3, 7)): k.e(f"s_cmp_eq_u32 s{sU}, {u_}\ns_cselect_b32 s{sW2}, s{PTR+2*sl}, s{sW2}\ns_cselect_b32 s{sW2+1}, s{PTR+2*sl+1}, s{sW2+1}")
        k.e(f"s_cselect_b32 s{sW2+2}, {2048*896}, s{sW2+2}\nbuffer_load_dword v255, v{vT2}, s[{sW2}:{sW2+3}], 0 offen")
        srd(k, sW2, 2, 448*896); k.e(f"buffer_load_dword v255, v{vT2}, s[{sW2}:{sW2+3}], 0 offen")
    nonce(k)
    lin(k, sT1, [(sG, 128), (sJ, 4)], HELLO)
    Lh = k.label("hel")
    k.e(f"s_cmp_lg_u32 s{sU}, 0\ns_cbranch_scc1 {Lh}\ns_getreg_b32 s{sT0}, hwreg(HW_REG_XCC_ID, 0, 4)\ns_xor_b32 s{sT0}, s{sT0}, s{sNON}\nv_mov_b32 v{vS}, s{sT0}\ns_mov_b64 exec, 1\nbuffer_store_dword v{vS}, off, {WS}, s{sT1} sc1\ns_mov_b64 exec, -1\n{Lh}:")
    def reads(ks):
        s_ = ks & 3
        return [f"ds_read_b128 {v(XF+4*ks,4)}, v{vXr+s_}"] + [f"ds_read_b64_tr_b16 {v(WF+8*s_+4*t+2*j,2)}, v{vWr} offset:{AXB + t*4096 + s_*1024 + j*256}" for t in range(2) for j in range(2)]
    k.e("s_barrier")
    stamp(k, 1)
    for o in reads(0) + reads(1): k.e(o)
    for ks in range(28):
        s_ = ks & 3; c = ks >> 2; z = ks == 0; xf = v(XF+4*ks,4)
        if s_ == 2 and c < 6:
            k.e("s_waitcnt lgkmcnt(0)\ns_barrier")
            for r in range(5): k.e(f"v_add_u32 v{vXr+r}, {(((c+1) % ANS - c % ANS)*ASLOT) & 0xffffffff}, v{vXr+r}")
        elif not (s_ == 3 and c < 6): k.e(f"s_waitcnt lgkmcnt({5 if ks < 27 else 0})")
        rd = reads(ks+2) if ks < 26 else []; fill = []
        if ks == 26: k.e(f"v_add_u32 v{vXr}, {ACS}, v{vA}")
        if ks == 27: rd = ["s_barrier", f"ds_read_b128 {v(SEL+8,4)}, v{vXr}", f"ds_read_b128 {v(SEL+12,4)}, v{vXr} offset:1024"]
        for r in range(4):
            t = TM + 2*(r & 1)
            fill += [f"v_and_b32 v{t}, 0xffff0000, v{XF+4*ks+r}", f"v_lshlrev_b32 v{t+1}, 16, v{XF+4*ks+r}", f"v_fmac_f32 v{SQ+(r&1)*2}, v{t}, v{t}", f"v_fmac_f32 v{SQ+(r&1)*2+1}, v{t+1}, v{t+1}"]
        wk, wv = v(WF+8*s_,4), v(WF+8*s_+4,4); aK, aV = v(ACC,16), v(ACC+16,16)
        mf = [f"{MF32} {aK}, {wk}, {xf}, {'0' if z else aK}", f"{MF32} {aV}, {xf}, {wv}, {'0' if z else aV}", f"{MF16} {v(SX,4)}, {v(SEL,4)}, {xf}, {'0' if z else v(SX,4)}"]
        for i, m in enumerate(mf):
            k.e(m)
            for o in rd[2*i:2*i+2] + fill[6*i:6*i+6]: k.e(o)
    stamp(k, 2)
    k.e(f"v_add_f32 v{SQ}, v{SQ}, v{SQ+1}\nv_add_f32 v{SQ+2}, v{SQ+2}, v{SQ+3}\nv_add_f32 v{vSS}, v{SQ}, v{SQ+2}")
    halfop(k, vSS, vT)
    lin(k, sT0, [(sU, 128)], AEX)
    k.e(f"v_mov_b32 v{vS}, v{SX}\nv_and_b32 v{vT2}, 31, v{vL}\nv_cmp_eq_u32 s[62:63], 28, v{vT2}\nv_cmp_lt_u32 s[64:65], 27, v{vT2}\nv_lshl_add_u32 v{vT2}, v{vT2}, 2, s{sT0}")
    k.e("s_waitcnt lgkmcnt(0)")
    for b in (CS, CS+4): k.e(f"v_add_f32 v{b}, v{b}, v{b+1}\nv_add_f32 v{b+2}, v{b+2}, v{b+3}\nv_add_f32 v{b}, v{b}, v{b+2}")
    ln_fin(k, vS, vSS)
    k.e(f"""v_rsq_f32 v{vSS}, v{vSS}
    v_mul_f32 v{vS}, 0.5, v{vS}
    v_lshrrev_b32 v{vWr}, 5, v{vL}
    ds_write_b32 v{vT2}, v{vSS}
    v_mfma_f32_32x32x2_f32 {v(ACC,16)}, v{CS}, v{vS}, {v(ACC,16)}
    v_mfma_f32_32x32x2_f32 {v(ACC+16,16)}, v{vS}, v{CS+4}, {v(ACC+16,16)}
    v_lshl_add_u32 v{vWr}, v{vWr}, 4, s{sT0}
    v_cmp_lt_u32 vcc, 31, v{vL}
    v_mov_b32 v{vT}, 0x3f80
    v_cndmask_b32 v{vXr}, 0, v{vONE}, s[62:63]
    s_waitcnt lgkmcnt(0)""")
    for g_ in range(4): k.e(f"ds_read_b128 {v(WF+4*g_,4)}, v{vWr} offset:{32*g_}")
    lin(k, sT1, [(HD(), 64*4096), (TB(), 4*4096), (sU, 4096)], KVF)
    k.e("s_nop 1")
    for h in range(2):
        for r in range(8*h, 8*h+8): k.e(f"v_mul_f32 v{ACC+r}, v{ACC+r}, v{vSS}")
        for r in range(4*h, 4*h+4): k.e(f"v_cvt_pk_bf16_f32 v{PK+r}, v{ACC+2*r}, v{ACC+2*r+1}")
        if h: k.e(f"v_cndmask_b32 v{PK+6}, v{PK+6}, v{vONE}, vcc\nv_cndmask_b32 v{PK+7}, v{PK+7}, v{vT}, vcc")
        k.e(f"buffer_store_dwordx4 {v(PK+4*h,4)}, v{vA}, {WS}, s{sT1} offen offset:{1024*h} sc1")
    k.e("s_waitcnt lgkmcnt(0)")
    b = ACC+16
    for h in range(2):
        for r in range(8*h, 8*h+8): k.e(f"v_mul_f32 v{b+r}, v{b+r}, v{WF+r}")
        for r in range(4*h, 4*h+4): k.e(f"v_cvt_pk_bf16_f32 v{PK+8+r}, v{b+2*r}, v{b+2*r+1}")
        for r in range(4*h, 4*h+4): k.e(f"v_cndmask_b32 v{PK+8+r}, v{PK+8+r}, v{vXr}, s[64:65]")
        k.e(f"buffer_store_dwordx4 {v(PK+8+4*h,4)}, v{vA}, {WS}, s{sT1} offen offset:{2048+1024*h} sc1")
    if O.mwarm:
        k.e(f"v_lshlrev_b32 v{vT2}, 7, v{vL}\ns_lshr_b32 s{sT0}, s{sU}, 1\ns_lshr_b32 s{sT2}, s2, 3\ns_mov_b64 exec, 0x1ffffff")
        srd(k, sW, 2, 448*896); lin(k, sT1, [(sT2, 100*128), (sU, 25*128)])
        k.e(f"buffer_load_dword v255, v{vT2}, s[{sW}:{sW+3}], s{sT1} offen\ns_bitcmp1_b32 s{sU}, 0\ns_cselect_b32 s{sW}, s{PTR+10}, s{PTR+8}\ns_cselect_b32 s{sW+1}, s{PTR+11}, s{PTR+9}\ns_mov_b32 s{sW+2}, {448*3584}")
        lin(k, sT1, [(2, 50*128), (sT0, 25*128)])
        k.e(f"buffer_load_dword v255, v{vT2}, s[{sW}:{sW+3}], s{sT1} offen\ns_mov_b64 exec, 0x1fff")
        srd(k, sW, 6, 1792*896); lin(k, sT1, [(2, 52*128), (sU, 13*128)])
        k.e(f"buffer_load_dword v255, v{vT2}, s[{sW}:{sW+3}], s{sT1} offen\ns_mov_b64 exec, -1")
    k.e(f"v_mov_b32 v{vT}, {AEX+512}\ns_barrier\nds_read_b32 v{vT2}, v{vT}")
    def qrd(ks): return [f"ds_read_b64_tr_b16 {v(WF+4*(ks&7)+2*j,2)}, v{vWq} offset:{ks*1024 + j*256}" for j in range(2)]
    for ks in range(6):
        for o in qrd(ks): k.e(o)
    lin(k, sT1, [(HD(), 256), (TB(), 4), (sU, 64)], FA)
    k.e(f"s_waitcnt lgkmcnt(12)\nv_readfirstlane_b32 s{sSLOW}, v{vT2}")
    aQ = v(ACC+32,16); zero = B_zero()
    for ks in range(28):
        if ks == O.asig:
            signal(k, sT1, O.xmap, True, 3 if O.mwarm else 0); stamp(k, 3)
        k.e(f"s_waitcnt lgkmcnt({min(10, 2*(27-ks))})\n{MF32} {aQ}, {v(WF+4*(ks&7),4)}, {v(XF+4*ks,4)}, {'0' if ks == 0 else aQ}")
        if ks + 6 < 28:
            for o in qrd(ks+6): k.e(o)
        if ks >= 12:
            for o in zero[:-18][4*(ks-12):4*(ks-12)+4]: k.e(o)
        if ks == 22: k.e(f"v_add_u32 v{vWr}, {ACQ}, v{vA}\ns_barrier\nds_read_b128 {v(CS+8,4)}, v{vWr}")
    k.e(f"v_mul_f32 v{vSS}, {hex(f2u(28**-0.5*math.log2(math.e)))}, v{vSS}\ns_lshl_b32 s{sT0}, s{sU}, 11\ns_add_u32 s{sT0}, s{sT0}, {AQ}\nv_add_u32 v{vT2}, s{sT0}, v{vA}\nv_cmp_lt_u32 vcc, 31, v{vL}")
    b = CS+8
    k.e(f"v_add_f32 v{b}, v{b}, v{b+1}\nv_add_f32 v{b+2}, v{b+2}, v{b+3}\nv_add_f32 v{b}, v{b}, v{b+2}\ns_nop 1\nv_mfma_f32_32x32x2_f32 {aQ}, v{b}, v{vS}, {aQ}")
    for o in zero[-18:]: k.e(o)
    PK = WF
    b = ACC+32
    for r in range(16): k.e(f"v_mul_f32 v{b+r}, v{b+r}, v{vSS}")
    for r in range(8): k.e(f"v_cvt_pk_bf16_f32 v{PK+r}, v{b+2*r}, v{b+2*r+1}")
    k.e(f"v_cndmask_b32 v{PK+6}, v{PK+6}, 0, vcc\nv_cndmask_b32 v{PK+7}, v{PK+7}, 0, vcc\nds_write_b128 v{vT2}, {v(PK,4)}\nds_write_b128 v{vT2}, {v(PK+4,4)} offset:1024")
    k.e("s_waitcnt lgkmcnt(0)\ns_barrier")
    for i in range(4):
        k.e(f"v_xor_b32 v{vT}, {(3-i)*2048}, v{vT2}\nds_read_b128 {v(Q+8*i,4)}, v{vT}\nds_read_b128 {v(Q+8*i+4,4)}, v{vT} offset:1024")

def A_help(k):
    vXa, vWa, vP = 40, 42, 43
    sXO, sWO, sXM, sWM = 62, 63, 64, 65
    k.e(f"""v_lshrrev_b32 v{vT}, 2, v{vL}
    v_mul_u32_u24 v{vWa}, 2688, v{vT}
    v_and_b32 v{vT}, 3, v{vL}
    v_lshl_add_u32 v{vWa}, v{vT}, 4, v{vWa}
    v_lshrrev_b32 v{vT}, 3, v{vL}
    v_mul_u32_u24 v{vXa}, 896, v{vT}
    v_lshrrev_b32 v{vT}, 4, v{vL}
    v_and_b32 v{vT2}, 7, v{vL}
    v_xor_b32 v{vT}, v{vT}, v{vT2}
    v_xor_b32 v{vT2}, 4, v{vT}
    v_lshl_add_u32 v{vXa+1}, v{vT2}, 4, v{vXa}
    v_lshl_add_u32 v{vXa}, v{vT}, 4, v{vXa}""")
    lin(k, sXO, [(TB(), 128*896), (sU, 32*896)]); lin(k, sWO, [(HD(), 56), (sU, 16*2688)])
    lin(k, sXM, [(sU, 4096)]); lin(k, sWM, [(sU, 1024)])
    ptrs(k)
    ops = []
    def issue(c):
        sl = (c % ANS)*ASLOT
        for t in range(2): dma(k, vWa, sW, sWM, sl + AXB + t*4096, sWO, c*64*2688 + (t+1)*896)
        for i in range(4): dma(k, vXa + (i & 1), sX, sXM, sl + i*1024, sXO, c*128 + i*8*896)
        ops.extend([c]*6)
    def pf():
        k.e(f"s_lshr_b32 s{sT2}, s2, 3\ns_lshl_b32 s{sT2}, s{sT2}, 2\ns_add_u32 s{sT2}, s{sT2}, s{sU}")
        if not O.xmap:
            k.e(f"v_mul_u32_u24 v{vT}, 9363, v{vL}\nv_lshrrev_b32 v{vT}, 16, v{vT}\nv_mul_u32_u24 v{vT}, {64*2688 - 7*128}, v{vT}\nv_lshl_add_u32 v{vP}, v{vL}, 7, v{vT}")
            k.e(f"s_lshr_b32 s{sT0}, s{sT2}, 1\ns_and_b32 s{sT2}, s{sT2}, 1"); lin(k, sT1, [(sT0, 2688), (sT2, 896)], 896 + O.apf*64*2688)
            k.e(f"buffer_load_dword v255, v{vP}, s[{sW}:{sW+3}], s{sT1} offen")
            lin(k, sT1, [(sG, 128*896), (sJ, 8*896), (sU, 2*896)])
            k.e(f"v_lshlrev_b32 v{vT}, 7, v{vL}\ns_mov_b64 exec, 0x3fff\nbuffer_load_dword v255, v{vT}, s[{sX}:{sX+3}], s{sT1} offen\ns_mov_b64 exec, -1")
            lin(k, sT1, [(sT0, 2688), (sT2, 4*64*2688)])
            k.e(f"s_mov_b64 exec, 0xfffffff\nbuffer_load_dword v255, v{vP}, s[{sW}:{sW+3}], s{sT1} offen\ns_mov_b64 exec, -1")
            ops.extend([-1]*3)
        else:
            k.e(f"v_and_b32 v{vT}, 15, v{vL}\nv_mul_u32_u24 v{vP}, 896, v{vT}\nv_lshrrev_b32 v{vT}, 4, v{vL}\nv_lshl_add_u32 v{vP}, v{vT}, 7, v{vP}")
            lin(k, sT1, [(sT2, 16*896)], 3*128)
            k.e(f"buffer_load_dword v255, v{vP}, s[{sX}:{sX+3}], s{sT1} offen")
            ops.append(-1)
    vCr, vCq, SEL, CSA, CF = 44, 45, 48, 52, 72
    def hsetup():
        H_setup(k)
        tr_addr(k, vCr, vT, 64, 32, 8)
        k.e(f"v_add_u32 v{vCr}, s{sWM}, v{vCr}\nv_add_u32 v{vCq}, {AWQ}, v{vCr}\nv_mov_b32 v{vT2}, 0x3f803f80\nv_lshrrev_b32 v{vT}, 2, v{vL}\nv_xor_b32 v{vT}, v{vT}, v{vL}\nv_and_b32 v{vT}, 4, v{vT}\nv_cmp_eq_u32 vcc, 0, v{vT}\ns_nop 1")
        for r in range(4): k.e(f"v_cndmask_b32 v{SEL+r}, 0, v{vT2}, vcc")
    nis = 0
    for c in range(O.anp):
        if O.apf is not None and c == O.apos: pf()
        if c == O.hset: hsetup()
        issue(c); nis += 1
    if O.apf is not None and O.anp == O.apos: pf()
    if O.hset >= O.anp: hsetup()
    nonce(k)
    nq = 0
    for c in range(7):
        last = max(i for i, o in enumerate(ops) if o == c)
        k.e(f"s_waitcnt vmcnt({len(ops)-1-last})\ns_barrier")
        for t in range(2):
            for j in range(2): k.e(f"ds_read_b64_tr_b16 {v(CF+4*t+2*j,2)}, v{vCr} offset:{AXB + t*4096 + j*256}")
        def csm():
            k.e("s_waitcnt lgkmcnt(0)")
            for t in range(2): k.e(f"{MF16} {v(CSA+4*t,4)}, {v(SEL,4)}, {v(CF+4*t,4)}, {'0' if c == 0 else v(CSA+4*t,4)}")
        if c == 2:
            lin(k, sT1, [(sG, 128)], HELLO); ops.append(-1)
            k.e(f"s_mov_b64 exec, 0xffff\nbuffer_load_dword v19, v17, {WS}, s{sT1} offen sc1\ns_mov_b64 exec, -1")
        if nis < 7: issue(nis); nis += 1
        else:
            for i in range(nq, min(7, nq+4) if c < 6 else 7): dma(k, vWa, sW, sWM, AWQ + i*4096, sWO, i*64*2688); ops.append(-1); nq = i+1
        if c == 6:
            csm(); lin(k, sT1, [(sU, 4)], ACS)
            k.e(f"v_add_u32 v{vT}, s{sT1}, v{vA}\ns_nop 4\nds_write_b32 v{vT}, v{CSA}\nds_write_b32 v{vT}, v{CSA+4} offset:1024\ns_waitcnt lgkmcnt(0)\ns_barrier")
        if c < 6: csm(); k.e(f"v_add_u32 v{vCr}, {(((c+1) % ANS - c % ANS)*ASLOT) & 0xffffffff}, v{vCr}")
    Lg = k.label("hok")
    k.e(f"s_getreg_b32 s{sT1}, hwreg(HW_REG_XCC_ID, 0, 4)\ns_xor_b32 s{sT1}, s{sT1}, s{sNON}\ns_mov_b64 exec, 0xffff\nv_cmp_ne_u32 vcc, s{sT1}, v19\ns_mov_b64 exec, -1")
    if not O.force_slow: k.e(f"s_cbranch_vccz {Lg}")
    hello_check(k)
    k.e(f"{Lg}:\nv_mov_b32 v{vT}, {AEX+512}\nv_mov_b32 v{vT2}, s{sSLOW}\nds_write_b32 v{vT}, v{vT2}\ns_waitcnt vmcnt(0) lgkmcnt(0)\ns_barrier")
    for i in range(7):
        for j in range(2): k.e(f"ds_read_b64_tr_b16 {v(CF+4*i+2*j,2)}, v{vCq} offset:{i*4096 + j*256}")
    lin(k, sT1, [(sU, 4)], ACQ); k.e(f"v_add_u32 v{vT}, s{sT1}, v{vA}\ns_waitcnt lgkmcnt(0)")
    for i in range(7): k.e(f"{MF16} {v(CSA,4)}, {v(SEL,4)}, {v(CF+4*i,4)}, {'0' if i == 0 else v(CSA,4)}")
    k.e(f"s_nop 7\nds_write_b32 v{vT}, v{CSA}\ns_waitcnt lgkmcnt(0)\ns_barrier")

def lcheck(k, R, Lok, Lfb, sPASS):
    for b in (R, R+4): k.e(f"v_add_f32 v{b}, v{b}, v{b+1}\nv_add_f32 v{b+2}, v{b+2}, v{b+3}\nv_add_f32 v{b}, v{b}, v{b+2}")
    k.e(f"""v_mov_b32 v{R+1}, {hex(f2u(2.0**-64))}
    v_mov_b32 v{R+2}, {hex(f2u(2.0**64))}
    v_cmp_nle_f32 vcc, v{R+1}, v{R}
    v_cmp_nle_f32 s[62:63], v{R+1}, v{R+4}
    v_cmp_nge_f32 s[64:65], v{R+2}, v{R}
    v_cmp_nge_f32 s[66:67], v{R+2}, v{R+4}
    s_nop 0
    s_or_b64 vcc, vcc, s[62:63]
    s_or_b64 s[64:65], s[64:65], s[66:67]
    s_or_b64 vcc, vcc, s[64:65]
    s_cbranch_scc0 {Lok}
    s_cmp_eq_u32 s{sPASS}, 0
    s_cbranch_scc1 {Lfb}
    {Lok}:""")

def B_main(k):
    sKV, sIT, sPASS = 36, 37, 38
    vRW, vLW, vLR = 5, 6, 7
    k.e(f"s_mov_b32 s{sPASS}, 0")
    def kvbase(): lin(k, sKV, [(HD(), 64*4096), (sU, 16*4096)], KVF)
    def ld(slot):
        return [f"buffer_load_dwordx4 {v(KVS[slot]+4*i,4)}, v{vA}, {WS}, s{sKV} offen offset:{1024*i} {O.ldKV}" for i in range(4)] + [f"s_add_u32 s{sKV}, s{sKV}, 4096"]
    Lmain = k.label("Bmain"); k.e(Lmain + ":")
    lin(k, sT0, [(sU, 16384)], RD)
    k.e(f"v_add_u32 v{vRW}, s{sT0}, v{vA}\nv_add_u32 v{vLR}, {LA}, v{vA}\nv_and_b32 v{vLW}, 31, v{vL}")
    lin(k, sT0, [(sU, 512+4)])
    k.e(f"v_lshl_add_u32 v{vLW}, v{vLW}, 4, s{sT0}")
    def qk(n):
        kf = KVS[(n>>2) & 1]; sb = S + 16*(n & 1); q = Q + 8*(n & 3)
        return [f"{MF32} {v(sb,16)}, {v(kf,4)}, {v(q,4)}, 0", f"{MF32} {v(sb,16)}, {v(kf+4,4)}, {v(q+4,4)}, {v(sb,16)}"]
    def pv(n):
        vf = KVS[(n>>2) & 1] + 8; p = P + 8*(n & 1); o = OA + 16*(n & 3)
        return [f"{MF32} {v(o,16)}, {v(vf,4)}, {v(p,4)}, {v(o,16)}", f"{MF32} {v(o,16)}, {v(vf+4,4)}, {v(p+4,4)}, {v(o,16)}"]
    def rdw(i): return [f"ds_write_b128 v{vRW}, {v(OA+16*i+4*h,4)} offset:{i*4096 + h*1024}" for h in range(4)]
    def kvr(t): return [f"ds_read_b128 {v(KVS[t&1]+4*i,4)}, v{vRW} offset:{(t&3)*4096 + i*1024}" for i in range(4)]
    def step(n, last):
        sb = S + 16*(n & 1); p = P + 8*(n & 1); ops = []
        for i in range(16):
            ops.append(f"v_exp_f32 v{sb+i}, v{sb+i}")
            if i >= 2 and i % 2 == 0: ops.append(f"v_cvt_pk_bf16_f32 v{p+i//2-1}, v{sb+i-2}, v{sb+i-1}")
        mf = qk(n+1) + pv(n-1); extra = [[], [], [], []]
        if last and n == 15: mf = [None, None] + pv(n-1)
        if not (last and n >= 12):
            if n & 3 == 1: extra[3] = ["s_barrier"]
            if n & 3 == 2: extra = [[o] for o in kvr((n>>2) + 1)]; extra[3].append("s_waitcnt lgkmcnt(2)")
            if n & 3 == 3: extra[1] = ["s_waitcnt lgkmcnt(0)"]
        if not last and n == 15: extra[2] = [f"s_sub_u32 s{sIT}, s{sIT}, 1"]; extra[3] = [f"s_cmp_lg_u32 s{sIT}, 0"]
        if last and n >= 14: w = rdw(n-14); extra = [[], w[:1], w[1:2], w[2:]] if n == 14 else [[], [], w[:2], w[2:]]
        cuts = [0, 6, 12, 18, 23]
        for g_ in range(4):
            for o in ops[cuts[g_]:cuts[g_+1]]: k.e(o)
            if mf[g_]: k.e(mf[g_])
            for o in extra[g_]: k.e(o)
        k.e(f"v_cvt_pk_bf16_f32 v{p+7}, v{sb+14}, v{sb+15}")
    stamp(k, 4)
    k.e("s_waitcnt lgkmcnt(0)")
    stamp(k, 5)
    for o in qk(0): k.e(o)
    k.e(f"s_mov_b32 s{sIT}, 3\ns_waitcnt lgkmcnt(0)\ns_nop 7\ns_nop 2")
    Ll = k.label("Bloop"); k.e(".p2align 6\n" + Ll + ":")
    for n in range(16): step(n, False)
    k.e(f"s_cbranch_scc1 {Ll}")
    for n in range(16): step(n, True)
    k.e("s_nop 1")
    for o in pv(15): k.e(o)
    stamp(k, 6)
    for i in range(4): k.e(f"v_xor_b32 v{S+i}, {(3-i)*512}, v{vLW}\nv_add_u32 v{S+i}, {LA}, v{S+i}")
    for o in rdw(2): k.e(o)
    k.e("s_mov_b32 exec_lo, 0")
    for i in range(4): k.e(f"ds_write_b32 v{S+i}, v{OA+16*i+12}")
    k.e("s_mov_b64 exec, -1")
    for i in range(3):
        k.e(f"s_xor_b32 s{sT0}, s{sU}, {3-i}"); lin(k, sT0, [(sT0, 16384)], RD + i*4096); k.e(f"v_add_u32 v{S+4+i}, s{sT0}, v{vA}")
    k.e(f"s_waitcnt lgkmcnt(0)\ns_barrier\nds_read_b128 {v(P,4)}, v{vLR}\nds_read_b128 {v(P+4,4)}, v{vLR} offset:1024")
    for i in range(3):
        for h in range(4): k.e(f"ds_read_b128 {v(KV+16*i+4*h,4)}, v{S+4+i} offset:{h*1024}")
    Lfb, Lok = k.label("Bfb"), k.label("Bok")
    k.e("s_waitcnt lgkmcnt(12)")
    lcheck(k, P, Lok, Lfb, sPASS)
    lin(k, sT1, [(TB(), 4*32768), (sU, 32768), (HD(), 2048)], OF)
    b = OA+48
    k.e("s_waitcnt lgkmcnt(8)")
    for r in range(16): k.e(f"v_add_f32 v{b+r}, v{b+r}, v{KV+r}")
    k.e("s_waitcnt lgkmcnt(0)\ns_barrier")
    for r in [12] + [x for x in range(16) if x != 12]:
        k.e(f"v_add_f32 v{KV+16+r}, v{KV+16+r}, v{KV+32+r}\nv_add_f32 v{b+r}, v{b+r}, v{KV+16+r}")
        if r == 12: k.e(f"v_mov_b32 v{vT}, v{b+12}\nv_mov_b32 v{vT2}, v{b+12}")
        if r == 1: k.e(f"v_permlane32_swap_b32 v{vT}, v{vT2}")
        if r == 3: k.e(f"v_rcp_f32 v{vT2}, v{vT2}\nv_cmp_lt_u32 vcc, 31, v{vL}")
    for h in range(2):
        for r in range(8*h, 8*h+8): k.e(f"v_mul_f32 v{b+r}, v{b+r}, v{vT2}")
        for r in range(4*h, 4*h+4): k.e(f"v_cvt_pk_bf16_f32 v{P+r}, v{b+2*r}, v{b+2*r+1}")
        if h: k.e(f"v_cndmask_b32 v{P+6}, v{P+6}, 0, vcc\nv_cndmask_b32 v{P+7}, v{P+7}, 0, vcc")
        k.e(f"buffer_store_dwordx4 {v(P+4*h,4)}, v{vA}, {WS}, s{sT1} offen offset:{1024*h} {'sc1' if O.xmap else O.stO}")
    lin(k, sT1, [(TB(), 4*128), (sU, 128), (HD(), 4)], FB)
    signal(k, sT1, not O.xmap, O.stO == "sc1")
    stamp(k, 7)
    def fallback():
        M = KV + 16
        k.e(f"{Lfb}:\ns_waitcnt lgkmcnt(0)\ns_barrier\ns_mov_b32 s{sPASS}, 1\ns_mov_b32 s{sIT}, 16")
        kvbase()
        for j in range(4): k.e(f"v_mov_b32 v{M+j}, 0xff800000")
        Lf = k.label("Bfl"); k.e(Lf + ":")
        for o in ld(0)[:2]: k.e(o)
        k.e(f"s_add_u32 s{sKV}, s{sKV}, 4096\ns_waitcnt vmcnt(0)")
        for j in range(4):
            for o in qk(j): k.e(o)
            k.e("s_nop 7\ns_nop 7")
            for r in range(0, 16, 2): k.e(f"v_max3_f32 v{M+j}, v{M+j}, v{S+16*(j&1)+r}, v{S+16*(j&1)+r+1}")
        k.e(f"s_sub_u32 s{sIT}, s{sIT}, 1\ns_cmp_lg_u32 s{sIT}, 0\ns_cbranch_scc1 {Lf}")
        for j in range(4):
            halfop(k, M+j, M+4, "v_max_f32")
            k.e(f"v_xor_b32 v{S+j}, {(3-j)*512}, v{vLW}\nv_add_u32 v{S+j}, {LA}, v{S+j}\nds_write_b32 v{S+j}, v{M+j}\nv_and_b32 v{S+j}, -16, v{S+j}")
        k.e("s_waitcnt lgkmcnt(0)\ns_barrier")
        for j in range(4): k.e(f"ds_read_b128 {v(S+16+4*j,4)}, v{S+j}")
        k.e(f"v_cmp_lt_u32 vcc, 31, v{vL}\ns_waitcnt lgkmcnt(0)\ns_barrier")
        for j in range(4):
            b = S+16+4*j; h, m_, l_ = S+8, S+9, S+10
            k.e(f"""v_max3_f32 v{b}, v{b}, v{b+1}, v{b+2}
            v_max_f32 v{b}, v{b}, v{b+3}
            v_sub_f32 v{b}, 0, v{b}
            v_and_b32 v{h}, 0xffff0000, v{b}
            v_sub_f32 v{b}, v{b}, v{h}
            v_and_b32 v{m_}, 0xffff0000, v{b}
            v_sub_f32 v{b}, v{b}, v{m_}
            v_lshrrev_b32 v{l_}, 16, v{b}
            v_lshrrev_b32 v{h}, 16, v{h}
            v_or_b32 v{h}, v{h}, v{m_}
            v_cndmask_b32 v{Q+8*j+6}, v{Q+8*j+6}, v{h}, vcc
            v_cndmask_b32 v{Q+8*j+7}, v{Q+8*j+7}, v{l_}, vcc""")
        k.e("s_barrier")
        for o in kvr(0): k.e(o)
        for o in B_zero(): k.e(o)
        k.e(f"s_branch {Lmain}")
    return fallback

def dw_setup(k, vWa, sWO, sWM, t3=5):
    k.e(f"""s_bitcmp1_b32 s{sU}, 0
    s_cselect_b32 s{sW2}, s{PTR+10}, s{PTR+8}
    s_cselect_b32 s{sW2+1}, s{PTR+11}, s{PTR+9}
    s_cselect_b32 s{sWM}, {DUP}, 0
    s_mov_b32 s{sW2+2}, {448*3584}
    s_mov_b32 s{sW2+3}, 0x20000
    s_lshr_b32 s{sT0}, s{sU}, 1
    s_mul_i32 s{sT1}, s{sT0}, 7168
    s_add_u32 s{sWM}, s{sWM}, s{sT1}""")
    lin(k, sWO, [(sT0, 32*3584), (sJ, 224)])
    k.e(f"s_and_b32 s{sT0}, s{sJ}, 1\ns_lshl_b32 s{sT1}, s{sT0}, 5\ns_mul_i32 s{sT0}, s{sT0}, 192\ns_sub_u32 s{sT0}, 192, s{sT0}")
    for i in range(7):
        a_ = vWa+i
        k.e(f"""v_add_u32 v{vT}, {64*i}, v{vL}
        v_mul_u32_u24 v{a_}, 1171, v{vT}
        v_lshrrev_b32 v{a_}, 16, v{a_}
        v_mul_u32_u24 v{vT2}, 56, v{a_}
        v_sub_u32 v{vT}, v{vT}, v{vT2}
        v_mul_u32_u24 v{a_}, {4*3584}, v{a_}
        v_cmp_gt_u32 vcc, 48, v{vT}
        v_mul_u32_u24 v{vT2}, 5462, v{vT}
        v_lshrrev_b32 v{vT2}, 16, v{vT2}
        v_mul_u32_u24 v{vT2}, {3584-192}, v{vT2}
        v_lshl_add_u32 v{vT2}, v{vT}, 4, v{vT2}
        v_add_u32 v{vT2}, s{sT1}, v{vT2}
        v_bfe_u32 v{t3}, v{vT}, 1, 2
        v_mul_u32_u24 v{t3}, 3584, v{t3}
        v_and_b32 v{vT}, 1, v{vT}
        v_lshl_add_u32 v{t3}, v{vT}, 4, v{t3}
        v_add_u32 v{t3}, s{sT0}, v{t3}
        v_cndmask_b32 v{vT}, v{t3}, v{vT2}, vcc
        v_add_u32 v{a_}, v{a_}, v{vT}""")
def dw_issue(k, c, vWa, sWO, sWM, idx=range(7)):
    for i in idx: dma(k, vWa+i, sW2, sWM, (c % 5)*DSLOT + i*1024, sWO, c*64*3584)

def dr_addr(k, vWr, vWh):
    k.e(f"""v_lshrrev_b32 v{vT}, 5, v{vL}
    v_mul_u32_u24 v{vWr}, 896, v{vT}
    v_bfe_u32 v{vT}, v{vL}, 4, 1
    v_mul_u32_u24 v{vT}, {DUP}, v{vT}
    v_add_u32 v{vWr}, v{vWr}, v{vT}
    v_and_b32 v{vT}, 3, v{vL}
    v_lshl_add_u32 v{vWr}, v{vT}, 3, v{vWr}
    v_bfe_u32 v{vT}, v{vL}, 2, 2
    v_lshl_add_u32 v{vWh}, v{vT}, 5, v{vWr}
    v_mul_u32_u24 v{vT}, 192, v{vT}
    v_add_u32 v{vWr}, v{vWr}, v{vT}""")

CA, SEL, vCr, vCh, CF = 20, 48, 52, 53, 128
def cs_setup(k, sl):
    dr_addr(k, vCr, vCh); lin(k, sT0, [(sU, 4*896)], sl*DSLOT); lin(k, sT1, [(sU, 4096)], CSH)
    k.e(f"v_add_u32 v{vCr}, s{sT0}, v{vCr}\nv_add_u32 v{vCh}, s{sT0}, v{vCh}\nv_lshl_add_u32 v{vCh+1}, v{vL}, 2, s{sT1}\nv_mov_b32 v{vT2}, 0x3f803f80\nv_lshrrev_b32 v{vT}, 2, v{vL}\nv_xor_b32 v{vT}, v{vT}, v{vL}\nv_and_b32 v{vT}, 4, v{vT}\nv_cmp_eq_u32 vcc, 0, v{vT}\ns_nop 1")
    for r in range(4): k.e(f"v_cndmask_b32 v{SEL+r}, 0, v{vT2}, vcc")
def cs_chunk(k, c, prio, p0=2):
    k.e(f"s_setprio {p0}")
    if c in (3, 5): d = (3*DSLOT*(4-c)) & 0xffffffff; k.e(f"v_add_u32 v{vCr}, {d}, v{vCr}\nv_add_u32 v{vCh}, {d}, v{vCh}")
    for t in range(7):
        for j in range(2): k.e(f"ds_read_b64_tr_b16 {v(CF+4*t+2*j,2)}, v{vCr if t < 6 else vCh} offset:{(c % 5 % 3)*DSLOT + 2*j*896 + (32*t if t < 6 else 768)}")
    k.e("s_waitcnt lgkmcnt(0)")
    for t in range(7): k.e(f"{MF16} {v(CA+4*t,4)}, {v(SEL,4)}, {v(CF+4*t,4)}, {'0' if c == 0 else v(CA+4*t,4)}")
    k.e(f"s_setprio {prio}")

def D_main(k):
    ACC, WF, XF, NXR = 8, 120, 148, 27
    ST_, CT = XF + 4*22, XF + 4*2
    vWr, vWh, vS, vSS = 5, 0, 6, 7
    sWO, sWM, sXO, sM6 = 36, 37, 38, 39
    XA = 240
    dw_setup(k, XA, sWO, sWM)
    for c in (2, 3): dw_issue(k, c, XA, sWO, sWM)
    cs_setup(k, 0)
    for c in range(2): cs_chunk(k, c, 1)
    k.e("s_waitcnt vmcnt(0)\ns_barrier")
    for c in (2, 3): cs_chunk(k, c, 1, O.csp)
    dr_addr(k, vWr, vWh)
    def wrd(dst, s_, j, t): return f"ds_read_b64_tr_b16 {v(dst+2*j,2)}, v{vWr if t < 6 else vWh} offset:{(4*s_+2*j)*896 + (32*t if t < 6 else 768)}"
    for t in range(7): k.e(f"ds_write_b32 v{vCh+1}, v{CA+4*t} offset:{256*t}")
    k.e("s_waitcnt lgkmcnt(0)\ns_barrier")
    if '(dw,4)' not in O.dplan: dw_issue(k, 4, XA, sWO, sWM)
    k.e(f"v_lshlrev_b32 v{vT2}, 2, v{vL}")
    lin(k, sT1, [(sG, 4*128), (sU, 128)], FC); lin(k, sXO, [(sG, 4*28*1024), (sU, 28*1024)], HF); lin(k, sT2, [(sG, 4*4096), (sU, 4096)], STP)
    def reads(ks, t): return [wrd(WF+4*t, ks & 3, j, t) for j in range(2)]
    for t in range(7):
        for o in reads(0, t): k.e(o)
    stamp(k, 8)
    poll(k, vT2, sT1, 16)
    stamp(k, 9)
    vm = []
    def xld(ks):
        vm.append(ks)
        o = [f"buffer_load_dwordx4 {v(XF+4*(ks%NXR),4)}, v{vA}, {WS}, s{sXO} offen offset:{1024*(ks&3)} sc1"]
        return o + ([f"s_add_u32 s{sXO}, s{sXO}, 4096"] if ks & 3 == 3 else [])
    def vwait(x): return len(vm) - 1 - max(i for i, o in enumerate(vm) if o == x)
    nx = O.dx0
    for ks in range(nx):
        for o in xld(ks): k.e(o)
    k.e(f"v_add_u32 v{vT2}, {STG}, v{vA}")
    LB = [XF+4*6, XF+4*11, XF+4*16]
    def lastreads(t): return [wrd(LB[t%3]+4*s_, s_, j, t) for s_ in range(4) for j in range(2)] + [f"ds_read_b128 {v(LB[t%3]+16,4)}, v{vT2} offset:{1024*t}"]
    st = []
    for d in (8, 4, 2): st += [f"v_add_f32 v{ST_+r}, v{ST_+r}, v{ST_+d+r}" for r in range(0, d, 2)]
    st += [f"v_mov_b32 v{vS}, v{ST_}", f"v_permlane32_swap_b32 v{vS}, v{ST_}", f"v_add_f32 v{vS}, v{vS}, v{ST_}", f"v_mul_f32 v{vS}, {hex(f2u(-1.0/448))}, v{vS}"]
    st += [f"v_cvt_pk_bf16_f32 v{CT}, v{vS}, v{vS}", f"v_and_b32 v{vT}, 0xffff0000, v{CT}", f"v_sub_f32 v{vT}, v{vS}, v{vT}", f"v_cvt_pk_bf16_f32 v{CT+1}, v{vT}, 0", f"v_mov_b32 v{CT+2}, v{CT}", f"v_mov_b32 v{CT+3}, v{CT+1}"]
    KST, KS0, BT = 5, 8, 2
    lg = [("w", 0, t) for t in range(7) for j in range(2)]
    def lwait(x): return min(15, len(lg) - 1 - max(i for i, o in enumerate(lg) if o == x))
    for ks in range(24):
        bar = ks & 3 == 3
        for t in range(7):
            if t == 0: k.e(f"s_waitcnt vmcnt({vwait('st') if ks == KST else vwait(ks)}) lgkmcnt({lwait(('w', ks, 0))})")
            elif t & 1 and not (bar and t > BT): k.e(f"s_waitcnt lgkmcnt({lwait(('w', ks, t+1))})")
            if ks == 0 and t == 0: stamp(k, 10); stamp(k, 1, 'D')
            k.e(f"{MF32} {v(ACC+16*t,16)}, {v(WF+4*t,4)}, {v(XF+4*(ks%NXR),4)}, {'0' if ks == 0 else v(ACC+16*t,16)}")
            if bar and t == 0:
                d = ((((ks>>2)+1) % 5 - (ks>>2) % 5)*DSLOT) & 0xffffffff
                k.e(f"v_add_u32 v{vWr}, {d}, v{vWr}\nv_add_u32 v{vWh}, {d}, v{vWh}")
            if bar and t == BT:
                k.e("s_waitcnt lgkmcnt(0)"); stamp(k, 2 + 2*(ks>>2), "D"); k.e("s_barrier"); stamp(k, 3 + 2*(ks>>2), "D")
            todo = [t] if not bar else {2: [0, 1], 3: [2, 3]}.get(t, [t] if t > 3 else [])
            for tt in todo:
                if ks < 23:
                    for o in reads(ks+1, tt): k.e(o); lg.append(("w", ks+1, tt))
                else:
                    for o in lastreads(0)[2*tt:2*tt+2]: k.e(o)
            if t in (1, 3, 5) and nx < 28 and (nx < 22 or ks > KST):
                for o in xld(nx): k.e(o)
                nx += 1
            if ks < 2 and t in (2, 4):
                q = 2*ks + (t >> 2); vm.append("st")
                k.e(f"buffer_load_dwordx4 {v(ST_+4*q,4)}, v{vA}, {WS}, s{sT2} offen offset:{1024*q} sc1")
            if ks in (KST, KST+1):
                for o in st[4*(7*(ks-KST)+t):4*(7*(ks-KST)+t)+4]: k.e(o)
    assert nx == 28
    k.e(f"s_and_b32 s{sT0}, s{sJ}, 1")
    lin(k, sT2, [(sG, 4*112*1024), (sU, 112*1024), (sJ, 7*1024), (sT0, 1024)], MF)
    k.e(f"s_mul_i32 s{sT0}, s{sT0}, 7168\ns_sub_u32 s{sM6}, s{sT2}, s{sT0}\ns_add_u32 s{sM6}, s{sM6}, 4096")
    stamp(k, 11)
    def epi(t):
        b = ACC+16*t; o = []
        for r in range(8): o.append(f"v_max_f32 v{b+r}, 0, v{b+r}")
        for r in range(8): o.append(f"v_mul_f32 v{b+r}, v{b+r}, v{b+8+r}")
        for r in range(4): o.append(f"v_cvt_pk_bf16_f32 v{b+8+r}, v{b+2*r}, v{b+2*r+1}")
        return o
    def est(t):
        return ([f"s_add_u32 s{sT2}, s{sT2}, 4096"] if t == 4 else []) + [f"buffer_store_dwordx4 {v(ACC+16*t+8,4)}, v{vA}, {WS}, s{sT2 if t < 6 else sM6} offen offset:{1024*(t&3)} {O.stM if t < O.stMn else ''}"]
    for t in range(7):
        k.e("s_waitcnt vmcnt(0) lgkmcnt(0)" if t == 0 else "s_waitcnt lgkmcnt(0)")
        lr = lastreads(t+1) if t < 6 else []
        ep = epi(t-2) if t >= 2 else []
        for s_ in range(5):
            k.e(f"{MF32} {v(ACC+16*t,16)}, {v(LB[t%3]+4*s_,4)}, {v(XF+4*((24+s_)%NXR) if s_ < 4 else CT,4)}, {v(ACC+16*t,16)}")
            for o in lr[3*s_:3*s_+3]: k.e(o)
            if s_ == O.ests and t >= 3:
                for o in est(t-3): k.e(o)
            for o in ep[[0,3,6,9,14][s_]:[3,6,9,14,20][s_]]: k.e(o)
    stamp(k, 14, 'D')
    for o in est(4) + epi(5) + est(5) + epi(6) + est(6): k.e(o)
    k.e("s_barrier")
    lin(k, sT1, [(sG, 4*128), (sU, 128), (sJ, 4)], FD)
    signal(k, sT1, True, O.stM == "sc1" and O.stMn == 7)
    if O.wb:
        Lw = k.label("nowb"); k.e(f"s_cmp_lg_u32 s{sU}, 0\ns_cbranch_scc1 {Lw}\ns_cmp_lt_u32 s{sJ}, {O.wb}\ns_cbranch_scc1 {Lw}\nbuffer_wbl2 sc1\n{Lw}:")
    stamp(k, 12)

WOF = 72
EvD, EvR, EWA, EWB, sEO, sNB = 5, 6, 200, 72, 27, 3
def e_setup(k):
    k.e(f"s_lshr_b32 s{sNB}, s{sJ}, 1"); lin(k, sEO, [(sU, 448*896), (sNB, 128)])
    k.e(f"""v_lshrrev_b32 v{vT}, 3, v{vL}
    v_mul_u32_u24 v{EvD}, 896, v{vT}
    v_bfe_u32 v{vT}, v{vL}, 4, 1
    v_lshlrev_b32 v{vT}, 2, v{vT}
    v_and_b32 v{vT2}, 7, v{vL}
    v_xor_b32 v{vT}, v{vT}, v{vT2}
    v_lshl_add_u32 v{EvD}, v{vT}, 4, v{EvD}""")
    tr_addr(k, EvR, vT, 128, 32)
    k.e(f"v_lshrrev_b32 v{vT}, 3, v{vL}\nv_xor_b32 v{vT}, s{sU}, v{vT}\nv_and_b32 v{vT}, 1, v{vT}\nv_lshl_add_u32 v{EvR}, v{vT}, 6, v{EvR}\nv_xor_b32 v{EvR+1}, 64, v{EvR}")
def H_setup(k):
    sWO, sWM, sB, sPASS, sNQ, sTT, sKV, sKM = 36, 37, 38, 39, 60, 61, 6, 7
    vWa, vD, vR, vC, vX, XR = 8, 15, 16, 17, 18, 56
    dw_setup(k, vWa, sWO, sWM)
    k.e(f"s_and_b32 s{sNQ}, s{sJ}, 3\ns_lshr_b32 s{sTT}, s{sJ}, 2\ns_lshl_b32 s{sT0}, s{sG}, 2\ns_add_u32 s{sTT}, s{sTT}, s{sT0}")
    k.e(f"v_lshrrev_b32 v{vT}, 2, v{vL}\nv_mul_u32_u24 v{vD}, 896, v{vT}\nv_and_b32 v{vT}, 3, v{vL}\nv_lshl_add_u32 v{vD}, v{vT}, 4, v{vD}")
    k.e(f"s_mul_i32 s{sB}, s{sNQ}, 224\ns_and_b32 s{sB}, s{sB}, -64\ns_lshl_b32 s{sT0}, s{sU}, 6\ns_add_u32 s{sB}, s{sB}, s{sT0}")
    tr_addr(k, vR, vT, 64, 32)
    k.e(f"v_add_u32 v{vR}, s{sWM}, v{vR}\nv_lshlrev_b32 v{vC}, 2, v{vL}")
    k.e(f"v_and_b32 v{vT}, 31, v{vL}\nv_lshl_add_u32 v{vX}, v{vT}, 6, s{sWM}\nv_lshrrev_b32 v{vT}, 5, v{vL}\nv_lshl_add_u32 v{vX}, v{vT}, 3, v{vX}")
    e_setup(k)
    k.e(f"v_add_u32 v22, s{sWM}, v{EvR}\nv_add_u32 v23, s{sWM}, v{EvR+1}")
    lin(k, sKV, [(HD(), 64*4096), (sU, 4096)], KVF); lin(k, sKM, [(sU, 16384)], RD)

def B_help(k):
    sWO, sWM, sB, sPASS, sNQ, sTT, sKV, sKM = 36, 37, 38, 39, 60, 61, 6, 7
    vWa, vD, vR, vC, vX, XR = 8, 15, 16, 17, 18, 56
    srd(k, sW, 2, 448*896)
    vm = []
    def vw(x): return len(vm) - 1 - max(i for i, o in enumerate(vm) if o == x)
    def kv(t):
        k.e(f"s_add_u32 m0, s{sKM}, {(t&3)*4096}\ns_add_u32 s{sT0}, s{TB()}, {t}\ns_and_b32 s{sT0}, s{sT0}, 15\ns_lshl_b32 s{sT0}, s{sT0}, 14\ns_add_u32 s{sT0}, s{sT0}, s{sKV}")
        for i in range(4): k.e(f"buffer_load_dwordx4 v{vA}, {WS}, s{sT0} offen offset:{1024*i} {O.ldKV} lds"); vm.append(("kv", t))
    def dw_i(c): dw_issue(k, c, vWa, sWO, sWM); vm.extend([("dw", c)]*7)
    def wo_r(p, sl):
        k.e(f"s_waitcnt vmcnt({vw(('wo', p))})"); Lj = k.label("wj")
        for u in range(4):
            Ln = k.label("wn"); b = WOF + 32*((p - u) & 3)
            if u < 3: k.e(f"s_cmp_lg_u32 s{sU}, {u}\ns_cbranch_scc1 {Ln}")
            for hh in range(4):
                for s_ in range(2):
                    for j in range(2): k.e(f"ds_read_b64_tr_b16 {v(b+8*hh+4*s_+2*j,2)}, v{vR} offset:{sl*DSLOT + (hh*28+16*s_+8*j)*64}")
            if u < 3: k.e(f"s_branch {Lj}\n{Ln}:")
        k.e(f"{Lj}:\ns_waitcnt lgkmcnt(0)")
        if p == 3:
            k.e("s_mov_b32 exec_lo, 0")
            for q in range(4): k.e(f"v_mov_b32 v{WOF+32*q+30}, 0\nv_mov_b32 v{WOF+32*q+31}, 0")
            k.e("s_mov_b32 exec_lo, -1")
    def x_r():
        k.e(f"s_waitcnt vmcnt({vw('x')})")
        for g_ in range(4): k.e(f"ds_read_b64 {v(XR+2*g_,2)}, v{vX} offset:{16*g_}")
        k.e("s_waitcnt lgkmcnt(0)")
    def e_r(p, sl):
        k.e(f"s_waitcnt vmcnt({vw(('e', p))})")
        for h in range(7*p, 7*p+7):
            for i in range(2): k.e(f"ds_read_b64_tr_b16 {v(EWA+8*(h>>1)+4*i+2*(h&1),2)}, v{22+i} offset:{sl*DSLOT + (h-7*p)*1024}")
        k.e("s_waitcnt lgkmcnt(0)")
    def one(tag, *a_): dma(k, *a_); vm.append(tag)
    def tch(sr, terms, const, nl, stride=128):
        lin(k, sT1, terms, const); k.e(f"s_mov_b32 exec_lo, {hex((1 << min(nl, 32)) - 1)}\ns_mov_b32 exec_hi, {hex((1 << max(nl-32, 0)) - 1)}")
        touch(k, sr, sT1, 1, stride); k.e("s_mov_b64 exec, -1"); vm.append("t")
    def pf_gu(c):
        k.e(f"s_lshr_b32 s{sT2}, s2, 3\ns_lshr_b32 s{sT0}, s{sU}, 1"); tch(sW2, [(sT2, 2*3584), (sT0, 3584)], c*64*3584, 28)
    def pf_wo():
        k.e(f"s_lshr_b32 s{sT2}, s2, 3"); tch(sW, [(sT2, 100*128), (sU, 25*128)], 0, 25)
    def pf_wd(h):
        if h < 0: tch(sW, [(sG, 16*8192), (sJ, 8192), (sU, 2048)], 0, 16)
        else: k.e(f"s_lshr_b32 s{sT2}, s2, 3"); tch(sW, [(sT2, 25*128), (sU, 448*896)], (h+1)*112*896, 25)
    def pre():
        if O.stM == "": tch(sWS, [(sG, 4*112*1024), (sU, 112*1024), (sJ, 7*1024)], MF, 56)
        if O.stO == "" and not O.xmap: tch(sWS, [(sG, 4*32768), (sU, 32768), (sJ, 2048)], OF, 16)
        if O.stH == "":
            tch(sWS, [(sTT, 28*1024), (sNQ, 7*1024), (sU, 1792)], HF, 14); tch(sWS, [(sTT, 4096), (sNQ, 1024), (sU, 256)], STP, 2)
        tch(sWS, [(sG, 4*128), (sU, 128)], FB, 3, FC-FB)
    F = lambda f, *a_: (lambda: f(*a_))
    f_wo = lambda p, sl: [[F(one, ("wo", p), vD, sW, sWM, sl*DSLOT + i*1024, sB, (p*112 + i*16)*896)] for i in range(7)]
    f_e = lambda p, sl: [[F(one, ("e", p), EvD, sW, sWM, sl*DSLOT + i*1024, sEO, (p*56 + i*8)*896)] for i in range(7)]
    f_dw = lambda c: [[F(one, ("dw", c), vWa+i, sW2, sWM, c*DSLOT + i*1024, sWO, c*64*3584)] for i in range(7)]
    def xset(): k.e(f"s_mul_i32 s{sT1}, s{sTT}, {32*896}\ns_add_u32 s{sB}, s{sB}, s{sT1}")
    f_x = lambda: [[F(one, "x", vD, sX, sWM, i*1024, sB, i*16*896)] for i in range(2)]
    def after(pre_, fill): fill[0] = pre_ + fill[0]; return fill
    stream = f_wo(0,0) + f_wo(1,1) + f_dw(2) + after([F(wo_r,0,0)], f_wo(2,0)) + after([F(wo_r,1,1)], f_wo(3,1)) + after([F(wo_r,2,0), F(srd, k, sW, 6, 1792*896)], f_e(0,0)) \
           + after([F(wo_r,3,1)], f_e(1,1)) + after([F(e_r,0,0), xset], f_x()) + after([F(e_r,1,1)], f_dw(1)) + after([x_r], f_dw(0))
    if O.ord3: stream = f_wo(0,0) + f_wo(1,1) + f_wo(2,2) + after([F(wo_r,0,0)], f_wo(3,0)) + after([F(wo_r,1,1), F(srd, k, sW, 6, 1792*896)], f_e(0,1)) + after([F(wo_r,2,2)], f_e(1,2)) \
           + after([F(wo_r,3,0), xset], f_x()) + after([F(e_r,0,1)], f_dw(1)) + after([x_r, F(e_r,1,2)], f_dw(0))
    jobs = [[] for _ in range(16)]
    def wd0(): srd(k, sW, 6, 1792*896); pf_wd(-1); srd(k, sW, 2, 448*896)
    def gu0(): k.e(f"s_lshr_b32 s{sT0}, s{sU}, 1"); tch(sW2, [(2, 50*128), (sT0, 25*128)], 0, 25)
    for f, sl in zip((pf_wo, gu0, wd0, pre), O.js):
        if f is pre or not O.mwarm: jobs[sl].append(f)
    i = 0
    for sl, n in enumerate(O.per):
        for f in stream[i:i+n]: jobs[1+sl] += f
        i += n
    assert i >= len(stream)
    for c, sl in O.pfgu.items(): jobs[sl].append(F(pf_gu, c))
    for h, sl in enumerate(O.pfwd): jobs[sl].append(F(pf_wd, h))
    if O.nojobs: jobs = [[] for _ in range(16)]; pass
    if not O.xmap: k.e("s_barrier")
    lin(k, sT1, [(HD(), 256), (sU, 64)], FA)
    stamp(k, 2)
    poll(k, vC, sT1, 16)
    stamp(k, 3)
    kv(1)
    if O.xmap: k.e("s_barrier")
    kv(2)
    for t in range(15):
        if t < 14: stamp(k, t+1, "B0")
        k.e(f"s_waitcnt vmcnt({vw(('kv', t+1))})")
        if t < 14: stamp(k, t+1, "B1")
        k.e("s_barrier")
        if t < 14: stamp(k, t+1, "B2")
        if t == 0: kv(3)
        if t + 4 < 16: kv(t+4)
        for f in jobs[t+1]: f()
    stamp(k, 5)
    Lre, Lok, Lfb = k.label("Hre"), k.label("Hok"), k.label("Hfb")
    k.e(f"s_mov_b32 s{sPASS}, 0\nv_add_u32 v{vD}, {LA}, v{vA}\n{Lre}:\ns_waitcnt vmcnt(0) lgkmcnt(0)\ns_barrier\nds_read_b128 v[20:23], v{vD}\nds_read_b128 v[24:27], v{vD} offset:1024\ns_waitcnt lgkmcnt(0)")
    lcheck(k, 20, Lok, Lfb, sPASS)
    k.e("s_barrier")
    def fallback():
        Lf = k.label("Hfl")
        k.e(f"{Lfb}:\ns_mov_b32 s{sPASS}, 0\n" + "s_barrier\n"*3 + f"""{Lf}:
        s_and_b32 s{sT1}, s{sPASS}, 3
        s_lshl_b32 s{sT1}, s{sT1}, 12
        s_add_u32 m0, s{sKM}, s{sT1}
        s_lshl_b32 s{sT0}, s{sPASS}, 14
        s_add_u32 s{sT0}, s{sT0}, s{sKV}""")
        for i in range(4): k.e(f"buffer_load_dwordx4 v{vA}, {WS}, s{sT0} offen offset:{1024*i} sc1 lds")
        k.e(f"s_add_u32 s{sPASS}, s{sPASS}, 1\ns_cmp_lt_u32 s{sPASS}, 16\ns_waitcnt vmcnt(0)\ns_barrier\ns_cbranch_scc1 {Lf}\ns_branch {Lre}")
    return fallback

def C_help(k):
    sWO, sWM, sB, sNQ, sTT = 36, 37, 38, 60, 61
    OFR, ACC, XR, TM = 16, 40, 56, 64
    if O.cpf:
        k.e(f"v_lshlrev_b32 v{vT2}, 7, v{vL}\ns_lshr_b32 s{sT2}, s2, 3\ns_lshr_b32 s{sB}, s{sU}, 1\ns_mov_b32 exec_hi, 0")
        for w, c in O.cpf:
            if w == 'g': lin(k, sT1, [(sT2, 2*3584), (sB, 3584)], c*64*3584)
            else: lin(k, sT1, [(sT2, 25*128), (sU, 448*896)], (c+1)*112*896)
            sr = sW2 if w == 'g' else sW
            k.e(f"s_mov_b32 exec_lo, {hex((1 << (28 if w == 'g' else 25)) - 1)}\nbuffer_load_dword v{TM}, v{vT2}, s[{sr}:{sr+3}], s{sT1} offen sc1")
        k.e("s_mov_b64 exec, -1")
    k.e(f"v_lshlrev_b32 v{vT2}, 2, v{vL}")
    lin(k, sT1, [(sTT, 128), (sU, 16)], FB); lin(k, sB, [(sTT, 32768), (sU, 8192)], OF); lin(k, sT2, [(sU, 8192)], OBUF)
    for q in range(4): k.e(f"s_add_u32 s{sT0}, s{sU}, {q}\ns_and_b32 s{sT0}, s{sT0}, 3\ns_lshl_b32 s{sT0}, s{sT0}, 13\ns_add_u32 s{sT0}, s{sT0}, {OBUF}\nv_add_u32 v{68+q}, s{sT0}, v{vA}")
    for r in range(8): k.e(f"v_lshlrev_b32 v{ACC+2*r}, 16, v{XR+r}\nv_and_b32 v{ACC+2*r+1}, 0xffff0000, v{XR+r}")
    stamp(k, 8)
    poll(k, vT2, sT1, 4)
    stamp(k, 9)
    for h in range(2):
        k.e(f"s_add_u32 m0, s{sT2}, {4096*h}\ns_add_u32 s{sT0}, s{sB}, {4096*h}")
        for i in range(4): k.e(f"buffer_load_dwordx4 v{vA}, {WS}, s{sT0} offen offset:{1024*i} sc1 lds")
    def rd(i):
        if i in (0, 4): k.e(f"s_waitcnt vmcnt({4-i})")
        if i == 8: k.e("s_barrier"); stamp(k, 10)
        k.e(f"ds_read_b128 {v(OFR+4*(i%6),4)}, v{68+(i>>3)} offset:{(i&7)*1024}")
    for i in range(5): rd(i)
    for i in range(32):
        nrd = {3: [], 4: [], 5: [8, 9, 10]}.get(i, [i+5] if i + 5 < 32 else [])
        k.e(f"s_waitcnt lgkmcnt({ {4: 3, 5: 2}.get(i, min(4, 31-i)) })\n{MF32} {v(ACC,16)}, {v(WOF+4*i,4)}, {v(OFR+4*(i%6),4)}, {v(ACC,16)}")
        for j in nrd: rd(j)
    Lw = k.label("noep")
    k.e(f"s_cmp_lg_u32 s2, 0\ns_cbranch_scc1 {Lw}\nv_mov_b32 v{vT}, s{sNON}\ns_mov_b32 s{sT0}, {FLG}\nbuffer_store_dword v{vT}, off, {WS}, s{sT0} sc1\n{Lw}:")
    k.e(f"s_and_b32 s{sB}, s{sNQ}, 1"); lin(k, sT1, [(sTT, 28*1024), (sNQ, 7*1024), (sU, 2048), (sB, -1024)], HF)
    k.e(f"s_lshl_b32 s4, s{sB}, 2\ns_add_u32 s4, s4, s{sU}")
    k.e(f"s_lshr_b32 s{sT0}, s{sU}, 1\ns_and_b32 s{sB}, s{sU}, 1"); lin(k, sT2, [(sTT, 4096), (sNQ, 1024), (sT0, 512), (sB, 8)], STP)
    for r in range(4): k.e(f"v_mov_b32 v{TM+r}, 0")
    for h in range(2):
        L3 = k.label("C3")
        k.e(f"s_cmp_eq_u32 s4, {4-h}\ns_cbranch_scc1 {L3}")
        for r in range(4*h, 4*h+4): k.e(f"v_cvt_pk_bf16_f32 v{XR+r}, v{ACC+2*r}, v{ACC+2*r+1}")
        k.e(f"buffer_store_dwordx4 {v(XR+4*h,4)}, v{vA}, {WS}, s{sT1} offen offset:{1024*h} {O.stH}")
        for r in range(8*h, 8*h+8): k.e(f"v_add_f32 v{TM+2*(r&1)}, v{TM+2*(r&1)}, v{ACC+r}\nv_fmac_f32 v{TM+2*(r&1)+1}, v{ACC+r}, v{ACC+r}")
        if h == 0: k.e(L3 + ":")
    k.e(f"""{L3}:
    v_add_f32 v{TM}, v{TM}, v{TM+2}
    v_add_f32 v{TM+1}, v{TM+1}, v{TM+3}
    v_mov_b32 v{TM+2}, v{TM}
    v_mov_b32 v{TM+3}, v{TM+1}
    s_nop 0
    v_permlane32_swap_b32 v{TM}, v{TM+2}
    v_permlane32_swap_b32 v{TM+1}, v{TM+3}
    s_mov_b32 exec_hi, 0
    v_add_f32 v{TM}, v{TM}, v{TM+2}
    v_add_f32 v{TM+1}, v{TM+1}, v{TM+3}
    buffer_store_dwordx2 {v(TM,2)}, v{vA}, {WS}, s{sT2} offen {O.stH}""")
    if not O.c2late: k.e("s_barrier")
    lin(k, sT1, [(sTT, 128), (sNQ, 16), (sU, 4)], FC)
    signal(k, sT1, True, O.stH == "sc1")
    if O.c2late: k.e("s_barrier")
    stamp(k, 11)

EP = [2*DSLOT, 3*DSLOT, 4*DSLOT, 0]
def DE_help(k):
    sWO, sWM, sEM, sSG, sTT, sXA, sXB = 36, 37, 39, 60, 61, 62, 63
    vWa, vD, vR = 8, EvD, EvR
    ACC, XF, HR = 8, 128, 192
    WR = lambda ks: EWA + 8*(ks % 14) if ks % 14 < 7 else EWB + 8*(ks % 14 - 7)
    Lno, Lend = k.label("noE"), k.label("Eend")
    cs_setup(k, 3)
    for t in range(7): k.e(f"ds_read_b32 v{CA+4*t}, v{vCh+1} offset:{256*t}\nv_mov_b32 v{CA+4*t+1}, 0\nv_mov_b32 v{CA+4*t+2}, 0\nv_mov_b32 v{CA+4*t+3}, 0")
    k.e("s_waitcnt lgkmcnt(0)")
    def cs(c): cs_chunk(k, c, O.hpd, O.hcp)
    def cw(_):
        k.e(f"s_lshr_b32 s{sT0}, s{sU}, 1\ns_and_b32 s{sT1}, s{sU}, 1"); lin(k, sT0, [(sT0, 512), (sT1, 8)], STG)
        k.e(f"s_setprio 2\nv_add_u32 v{vT2}, s{sT0}, v{vA}\ns_mov_b32 exec_hi, 0")
        for t in range(7):
            b = CA+4*t
            k.e(f"v_cvt_pk_bf16_f32 v{b+3}, v{b}, 0\nv_lshlrev_b32 v{b+1}, 16, v{b+3}\nv_sub_f32 v{b+1}, v{b}, v{b+1}\nv_cvt_pk_bf16_f32 v{b+2}, v{b}, v{b+1}\nds_write_b64 v{vT2}, {v(b+2,2)} offset:{1024*t}")
        k.e("s_mov_b32 exec_hi, -1\ns_waitcnt lgkmcnt(0)")
    k.e(f"s_cmp_ge_u32 s{sJ}, 14\ns_cbranch_scc1 {Lno}\ns_and_b32 s{sT0}, s{sJ}, 1")
    lin(k, sTT, [(sG, 4), (sT0, 2)]); lin(k, sEM, [(sU, 7168)]); lin(k, sSG, [(sU, 4096)], STG)
    k.e(f"v_add_u32 v16, s{sSG}, v{vR}\nv_add_u32 v17, s{sSG}, v{vR+1}\nv_add_u32 v{vR}, s{sEM}, v{vR}\nv_add_u32 v{vR+1}, s{sEM}, v{vR+1}")
    vm = []
    def vw(x): return len(vm) - 1 - max(i for i, o in enumerate(vm) if o == x)
    def si(r):
        for i in range(4 if r < 3 else 2): dma(k, vD, sW, sSG, i*1024, sEO, (112 + 32*r + 8*i)*896); vm.append(("s", r))
    def sr(r):
        k.e(f"s_waitcnt vmcnt({vw(('s', r))})")
        for s_ in range(2 if r < 3 else 1):
            for i in range(2):
                for j in range(2): k.e(f"ds_read_b64_tr_b16 {v(WR(7+2*r+s_)+4*i+2*j,2)}, v{16+i} offset:{(16*s_+8*j)*128}")
        k.e("s_waitcnt lgkmcnt(0)")
    def pc(p):
        for i in range(7): dma(k, vD, sW, sEM, EP[p] + i*1024, sEO, (224 + 56*p + 8*i)*896); vm.append(("p", p))
    def dw(c): dw_issue(k, c, vWa, sWO, sWM); vm.extend([("d", c)]*7)
    def ep(_):
        k.e(f"s_lshr_b32 s{sT0}, s{sU}, 1\ns_add_u32 s{sT1}, s{sTT}, s{sT0}\ns_xor_b32 s{sT2}, s{sT1}, 1\ns_and_b32 s{sT0}, s{sU}, 1")
        lin(k, sXA, [(sT1, 112*1024), (sU, 28*1024)], MF); lin(k, sXB, [(sT2, 112*1024), (sU, 28*1024)], MF)
        lin(k, sT2, [(sT1, 28*1024), (sNB, 4096), (sT0, 2048)], HF)
        lin(k, sSG, [(sT1, 32*896), (sNB, 128), (sT0, 64)])
        for h in range(2): k.e(f"buffer_load_dwordx4 {v(HR+4*h,4)}, v{vA}, {WS}, s{sT2} offen offset:{1024*h} sc1"); vm.append('h')
        lin(k, sT2, [(sT1, 4096)], STP)
        for h in range(4): k.e(f"buffer_load_dwordx4 {v(XF+4*h,4)}, v{vA}, {WS}, s{sT2} offen offset:{1024*h} sc1"); vm.append('h')
    plan = eval(O.dplan); plan[5].append((ep, 0))
    def run(plan):
        for c in range(7):
            for f, a_ in plan[c]:
                if f is cs and ('d', a_) in vm: k.e(f"s_waitcnt vmcnt({vw(('d', a_))})")
            k.e("s_barrier")
            for f, a_ in plan[c]: f(a_)
    for f, a_ in eval(O.dpre): f(a_)
    run(plan)
    lin(k, sEO, [(sSG, 1)])
    srd(k, sW, 7, 2048*896)
    k.e(f"v_and_b32 v{vT2}, 3, v{vL}\nv_lshlrev_b32 v{vT2}, 2, v{vT2}\nv_bfe_u32 v{vT}, v{vL}, 2, 1\nv_lshl_add_u32 v{vT2}, v{vT}, 7, v{vT2}")
    lin(k, sT1, [(sTT, 128), (sU, 16)], FD)
    k.e(f"s_waitcnt vmcnt({vw('h')})")
    for d in (8, 4, 2):
        for r in range(d): k.e(f"v_add_f32 v{XF+r}, v{XF+r}, v{XF+d+r}")
    halfop(k, XF, vT); halfop(k, XF+1, vT); ln_fin(k, XF, XF+1)
    k.e(f"v_rcp_f32 v0, v{XF+1}\nv_add_u32 v{vD}, {EP[0]}, v{vR+1}")
    stamp(k, 12)
    poll(k, vT2, sT1, 8)
    stamp(k, 13)
    k.e(f"v_add_u32 v{vT2}, {EP[0]}, v{vR}")
    def xld(ks):
        o = [f"buffer_load_dwordx4 {v(XF+8*(ks&7)+4*a_,4)}, v{vA}, {WS}, s{sXA+a_} offen offset:{1024*(ks&3)} sc1" for a_ in range(2)]
        return o + ([f"s_add_u32 s{sXA}, s{sXA}, 4096", f"s_add_u32 s{sXB}, s{sXB}, 4096"] if ks & 3 == 3 else [])
    nx = O.ex0
    for ks in range(nx):
        for o in xld(ks): k.e(o)
    def wrd(ks):
        o = []
        for i in range(2):
            for j in range(2):
                row = 16*(ks-14) + 8*j; p = row // 56
                o.append(f"ds_read_b64_tr_b16 {v(WR(ks)+4*i+2*j,2)}, v{(vR if p == 3 else vT2)+i} offset:{(0 if p == 3 else EP[p]-EP[0]) + (row % 56)*128}")
        return o
    for ks in range(28):
        k.e(f"s_waitcnt vmcnt({2*(nx-1-ks)})" + (" lgkmcnt(0)" if ks in (14, 15) else ""))
        ex = []
        for _ in range(2 if ks < O.exn else 1):
            if nx < 28 and nx < ks + 8: ex += xld(nx); nx += 1
        ex += wrd(ks+13) if 1 <= ks <= 14 else []
        for n, i in enumerate((3, 1, 2, 0)):
            acc = v(ACC+16*i,16)
            k.e(f"{MF32} {acc}, {v(WR(ks)+4*(i&1),4)}, {v(XF+8*(ks&7)+4*(i>>1),4)}, {'0' if ks == 0 else acc}")
            for o in ex[3*n:3*n+3]: k.e(o)
    stamp(k, 14)
    WR = 56
    k.e(f"v_add_u32 v{vT}, s{sEM}, v{vA}\nv_add_u32 v{vT}, {EP[0]}, v{vT}")
    for i in range(1, 4):
        k.e(f"s_xor_b32 s{sT0}, s{sU}, {i}"); lin(k, sT0, [(sT0, 7168)], EP[i-1]); k.e(f"v_add_u32 v{vT2+i}, s{sT0}, v{vA}")
    for i in (3, 1, 2):
        for h in range(4): k.e(f"ds_write_b128 v{vT}, {v(ACC+16*i+4*h,4)} offset:{EP[i-1]-EP[0] + h*1024}")
    k.e(f"v_and_b32 v{vT}, 31, v{vL}\nv_mul_u32_u24 v{vT2}, 896, v{vT}\nv_lshrrev_b32 v{vT}, 5, v{vL}\nv_lshl_add_u32 v{vT2}, v{vT}, 4, v{vT2}")
    for r in range(8): k.e(f"v_lshlrev_b32 v{XF+16+2*r}, 16, v{HR+r}\nv_and_b32 v{XF+17+2*r}, 0xffff0000, v{HR+r}")
    k.e("s_waitcnt lgkmcnt(0)\ns_barrier")
    for h in range(4):
        for i in range(1, 4): k.e(f"ds_read_b128 {v(WR+16*i+4*h,4)}, v{vT2+i} offset:{h*1024}")
    for h in range(4):
        k.e(f"s_waitcnt lgkmcnt({9-3*h})")
        for r in range(4*h, 4*h+4): k.e(f"v_add_f32 v{ACC+r}, v{ACC+r}, v{WR+16+r}\nv_add_f32 v{WR+32+r}, v{WR+32+r}, v{WR+48+r}")
        for r in range(4*h, 4*h+4): k.e(f"v_add_f32 v{ACC+r}, v{ACC+r}, v{WR+32+r}")
        for r in range(4*h, 4*h+4): k.e(f"v_fma_f32 v{ACC+r}, v{ACC+r}, v0, v{XF+16+r}")
        for r in range(2*h, 2*h+2): k.e(f"v_cvt_pk_bf16_f32 v{XF+r}, v{ACC+2*r}, v{ACC+2*r+1}")
        if h & 1:
            b = XF + 2*(h-1)
            k.e(f"s_nop 1\nv_permlane32_swap_b32 v{b}, v{b+2}\nv_permlane32_swap_b32 v{b+1}, v{b+3}\nbuffer_store_dwordx4 {v(b,4)}, v{vT2}, s[{sW}:{sW+3}], s{sEO} offen offset:{16*(h-1)} {O.stOut}")
    k.e(f"s_branch {Lend}\n{Lno}:")
    vm.clear(); k.e('s_nop 0'); run([[j for j in p if j[0] in (dw, cs, cw)] for p in plan])
    k.e(Lend + ":")

O.anp = 2
def build(wait=False):
    k = K(NAME); k.label = (lambda f: (lambda b: f(b).replace(NAME, "k")))(k.label)
    prolog(k)
    Lm = k.label("main")
    k.e(f"s_cmp_lt_u32 s{sWAVE}, 4\ns_cbranch_scc1 {Lm}")
    k.e(f"s_setprio {O.hpa}"); A_help(k); k.e(f"s_setprio 2"); fh = B_help(k); C_help(k); k.e(f"s_setprio {O.hpd}"); DE_help(k); stamp_out(k); k.e("s_endpgm")
    k.e(f"{Lm}:\ns_setprio 1")
    A_main(k); fb = B_main(k); D_main(k); stamp_out(k); k.e("s_endpgm"); fb(); fh(); k.e("L_k_end:")
    ks, la = [k.text(256)], [(NAME, 256, 512, 163840)]
    if wait:
        for nm, off, w in (("wait_kernel", 0, int(wait)), ("tail_kernel", 8, 0)):
            t = K(nm); L = t.label("l")
            t.e(f"""s_memrealtime s[16:17]
            s_load_dwordx2 s[8:9], s[0:1], 72
            s_mov_b32 s10, {WSREC}
            s_mov_b32 s11, 0x20000
            s_waitcnt lgkmcnt(0)
            {L}:
            s_memrealtime s[18:19]
            s_waitcnt lgkmcnt(0)
            s_sub_u32 s20, s18, s16
            s_cmp_lt_u32 s20, {w}
            s_cbranch_scc1 {L}
            v_mov_b32 v2, s16
            v_mov_b32 v3, s18
            s_mov_b32 s21, {TS + 0x40000 + off}
            buffer_store_dwordx2 v[2:3], off, s[8:11], s21 sc1
            s_endpgm""")
            ks.append(t.text(8))
        la = [("wait_kernel", 1, 64, 0)] + la + [("tail_kernel", 1, 64, 0)]
    return build_file(la, ks)
if __name__ == "__main__":
    open("fused.s", "w").write(build())
```
